```python
import torch

def _softmax(x, axis=-1):
    return torch.softmax(x, dim=axis)
def _gelu(x):
    return torch.nn.functional.gelu(x, approximate="tanh")
def _silu(x):
    return torch.nn.functional.silu(x)
def _sigmoid(x):
    return torch.sigmoid(x)
def _layernorm(x, axis=-1, eps=1e-5):
    m = x.mean(dim=axis, keepdim=True)
    v = x.var(dim=axis, keepdim=True, unbiased=False)
    return (x - m) / torch.sqrt(v + eps)
def _scatter_add(tgt, idx, src, axis=0):
    return tgt.clone().index_add_(axis, idx, src)
def _segment_sum(src, seg, n):
    out = torch.zeros((n,) + src.shape[1:], dtype=src.dtype)
    return out.index_add_(0, seg, src)
def _pad(x, pw):
    flat = tuple(v for pair in reversed(pw) for v in pair)
    return torch.nn.functional.pad(x, flat)

kernel_name = 'gated_mix__linear_attn_block__sliding_local_dilated__prompt'

def setup_inputs():

    _w = (lambda a: (lambda t: t.to(torch.bfloat16) if t.is_floating_point() else t)(torch.as_tensor(a)))
    def _A_setup():
        B, S, D = 1, 2048, 512
        return {
            "x": _w((lambda *s: torch.randn(*s, dtype=torch.bfloat16) * 0.05)(B, S, D)),
            "wqkv": _w((lambda *s: torch.randn(*s, dtype=torch.bfloat16) * 1.6)(D, 3 * D)),
            "wo": _w((lambda *s: torch.randn(*s, dtype=torch.bfloat16) * 0.4)(D, D)),
        }
    _A_in = _A_setup()

    def _B_setup():
        B, S, D = 1, 2048, 512
        return {
            "x": _w((lambda *s: torch.randn(*s, dtype=torch.bfloat16) * 0.05)(B, S, D)),
            "wqkv": _w((lambda *s: torch.randn(*s, dtype=torch.bfloat16) * 0.8)(D, 3 * D)),
            "wo": _w((lambda *s: torch.randn(*s, dtype=torch.bfloat16) * 0.05)(D, D)),
        }
    _B_in = _B_setup()

    return {
        "A_x": _A_in["x"],
        "A_wqkv": _A_in["wqkv"],
        "A_wo": _A_in["wo"],
        "B_x": _B_in["x"],
        "B_wqkv": _B_in["wqkv"],
        "B_wo": _B_in["wo"],
        "gate_w": _w((lambda *s: torch.randn(*s, dtype=torch.bfloat16) * 0.05)(512) * 16.0),
    }

def reference(A_x, A_wqkv, A_wo, B_x, B_wqkv, B_wo, gate_w):
    def _A_ref(x, wqkv, wo):
        B, S, D = x.shape
        H = 32; Dh = D // H
        qkv = (lambda x, *d: x.permute(*d))((x @ wqkv).reshape(B, S, 3, H, Dh), 2, 0, 3, 1, 4)
        q, k, v = qkv[0], qkv[1], qkv[2]
        phi = lambda t: torch.where(t > 0, t + 1, torch.exp(t)) + 1e-6
        pq, pk = phi(q), phi(k)
        kv = torch.einsum("bhsd,bhse->bhde", pk, v)
        z = torch.einsum("bhsd->bhd", pk)
        num = torch.einsum("bhqd,bhde->bhqe", pq, kv)
        den = torch.einsum("bhqd,bhd->bhq", pq, z)[..., None] + 1e-6
        o = num / den
        return (lambda x, *d: x.permute(*d))(o, 0, 2, 1, 3).reshape(B, S, D) @ wo

    def _B_ref(x, wqkv, wo):
        B, S, D = x.shape
        H = 32; Dh = D // H
        W, dil = 8, 2
        qkv = (lambda x, *d: x.permute(*d))((x @ wqkv).reshape(B, S, 3, H, Dh), 2, 0, 3, 1, 4)
        q, k, v = qkv[0], qkv[1], qkv[2]
        scale = Dh ** -0.5
        pos = torch.arange(S)
        off = torch.arange(W) * dil
        idx = pos[:, None] - off[None, :]
        mask = idx >= 0
        idx_c = torch.where(mask, idx, 0).reshape(-1)
        kg = k[:, :, idx_c, :].reshape(B, H, S, W, Dh)
        vg = v[:, :, idx_c, :].reshape(B, H, S, W, Dh)
        logits = torch.einsum("bhsd,bhswd->bhsw", q, kg) * scale
        logits = torch.where(mask[None, None, :, :], logits, -1e9)
        attn = _softmax(logits, axis=-1)
        o = torch.einsum("bhsw,bhswd->bhsd", attn, vg)
        return (lambda x, *d: x.permute(*d))(o, 0, 2, 1, 3).reshape(B, S, D) @ wo

    x = A_x
    g = _sigmoid((x * gate_w).sum(-1, keepdims=True))
    a = _A_ref(x, A_wqkv, A_wo)
    b = _B_ref(x, B_wqkv, B_wo)
    return g * a + (1 - g) * b
```

```python
import sys

NAME = "gated_mix__linear_attn_block__sliding_local_dilated__prompt"

WS_PQ = 0
WS_OB = 0x200000
WS_KV = 0x400000
WS_G = 0x410000
WS_SIZE = 0x420000

LOG2E = 0x3fb8aa3b
EPS = 0x358637bd
NEGBIG = 0xf149f2ca


class G:
    def __init__(self):
        self.L = []

    def __call__(self, s):
        for ln in s.split("\n"):
            ln = ln.strip()
            if ln:
                self.L.append(("" if ln.endswith(":") else "  ") + ln)

    def text(self):
        return "\n".join(self.L) + "\n"


def v(i, n=1):
    return f"v{i}" if n == 1 else f"v[{i}:{i+n-1}]"


def s(i, n=1):
    return f"s{i}" if n == 1 else f"s[{i}:{i+n-1}]"


def kernel_header(g, name):
    g(f".globl {name}\n.p2align 8\n.type {name},@function\n{name}:")


def kernel_desc(name, vgpr, sgpr=96):
    return f""".section .rodata,"a"
.p2align 6
.amdhsa_kernel {name}
  .amdhsa_next_free_vgpr {vgpr}
  .amdhsa_next_free_sgpr {sgpr}
  .amdhsa_accum_offset {(vgpr+3)//4*4}
  .amdhsa_group_segment_fixed_size 0
  .amdhsa_kernarg_size 80
  .amdhsa_user_sgpr_count 2
  .amdhsa_user_sgpr_kernarg_segment_ptr 1
  .amdhsa_system_sgpr_workgroup_id_x 1
.end_amdhsa_kernel
.text
"""


def srd(g, d, lo, hi, size):
    g(f"s_mov_b32 s{d}, s{lo}\ns_mov_b32 s{d+1}, s{hi}\ns_mov_b32 s{d+2}, {size:#x}\ns_mov_b32 s{d+3}, 0x20000")


def gen_k0(g):
    name = "k0_zero_kernel"
    kernel_header(g, name)
    g("s_cmp_ge_u32 s2, 9\ns_cbranch_scc1 K0_END")
    g("s_load_dwordx2 s[4:5], s[0:1], 72\ns_waitcnt lgkmcnt(0)")
    srd(g, 8, 4, 5, WS_SIZE)
    g("s_lshl_b32 s3, s2, 12\nv_lshlrev_b32 v1, 4, v0\nv_add_u32 v1, s3, v1")
    g(f"v_add_u32 v1, {WS_KV:#x}, v1")
    g("v_mov_b32 v4, 0\nv_mov_b32 v5, 0\nv_mov_b32 v6, 0\nv_mov_b32 v7, 0")
    g("buffer_store_dwordx4 v[4:7], v1, s[8:11], 0 offen")
    g("K0_END:\ns_endpgm")
    return kernel_desc(name, 16, 32)


XB = 18432
SLOT = 43008
SCR = 3 * SLOT
K1_LDS = SCR + 2 * 4352

S_X, S_W, S_WS, S_GT = 16, 20, 24, 28
sRB, sTY, sHG, sROT, sWV = 32, 33, 34, 35, 36


def k1_loader(g):
    lw = 37
    g("K1_LOADER:")
    g(f"s_sub_u32 s{lw}, s{sWV}, 4")
    g("v_lshrrev_b32 v1, 3, v0\nv_and_b32 v2, 7, v0")
    g(f"s_lshl_b32 s40, s{lw}, 3\nv_add_u32 v3, s40, v1")
    g("v_lshrrev_b32 v4, 4, v3\nv_and_b32 v5, 15, v3\nv_lshlrev_b32 v5, 1, v5\nv_add_u32 v5, v5, v4")
    g("v_lshrrev_b32 v6, 1, v3\nv_and_b32 v6, 7, v6\nv_xor_b32 v6, v6, v2\nv_lshlrev_b32 v6, 4, v6")
    g(f"s_lshl_b32 s41, s{sRB}, 7\nv_add_u32 v5, s41, v5\nv_lshlrev_b32 v5, 10, v5\nv_add_u32 v10, v5, v6")
    for j in range(1, 4):
        g(f"v_add_u32 v{10+j}, {j*32768}, v10")
    g(f"s_lshl_b32 s40, s{lw}, 2\nv_add_u32 v4, s40, v1")
    g("v_and_b32 v5, 7, v4\nv_lshlrev_b32 v5, 1, v5\nv_lshrrev_b32 v6, 3, v4\nv_add_u32 v5, v5, v6")
    g("s_sub_i32 s42, s41, 16\nv_add_u32 v5, s42, v5\nv_max_i32 v5, 0, v5\nv_lshlrev_b32 v5, 10, v5")
    g("v_lshrrev_b32 v6, 1, v4\nv_and_b32 v6, 7, v6\nv_xor_b32 v6, v6, v2\nv_lshlrev_b32 v6, 4, v6\nv_add_u32 v14, v5, v6")
    g("v_and_b32 v4, 2, v1\nv_lshlrev_b32 v4, 1, v4")
    g(f"s_and_b32 s40, s{lw}, 1\ns_lshl_b32 s40, s40, 1\nv_or_b32 v4, s40, v4\nv_xor_b32 v4, v4, v2\nv_lshlrev_b32 v4, 4, v4")
    g(f"v_mul_u32_u24 v5, 3072, v3\nv_add_u32 v5, v5, v4\ns_lshl_b32 s40, s{sHG}, 7\nv_add_u32 v15, s40, v5")
    g(f"v_add_u32 v16, {32*3072}, v15")
    g(f"s_lshl_b32 s43, s{lw}, 10")
    g(f"s_lshl_b32 s47, s{lw}, 9")
    g("s_mov_b32 s45, 0\ns_mov_b32 s46, 0")

    def issue():
        g(f"s_add_u32 s48, s45, s{sROT}\ns_and_b32 s48, s48, 7\ns_lshl_b32 s49, s48, 7\ns_mul_i32 s50, s48, {64*3072}")
        g("s_add_u32 s44, s46, s43")
        for j in range(4):
            g(f"s_add_u32 m0, s44, {j*4096}\ns_nop 0\nbuffer_load_dwordx4 v{10+j}, s[{S_X}:{S_X+3}], s49 offen lds")
        g(f"s_add_u32 s51, s46, s47\ns_add_u32 m0, s51, 16384\ns_mov_b32 exec_hi, 0")
        g(f"buffer_load_dwordx4 v14, s[{S_X}:{S_X+3}], s49 offen lds\ns_mov_b64 exec, -1")
        for j in range(6):
            t = j >> 1
            g(f"s_add_u32 m0, s44, {XB + t*8192 + 4*(j&1)*1024 - t*1024}\ns_nop 0")
            off = f" offset:{t*1024}" if t else ""
            g(f"buffer_load_dwordx4 v{15+(j&1)}, s[{S_W}:{S_W+3}], s50 offen{off} lds")
        g(f"s_add_u32 s45, s45, 1\ns_add_u32 s46, s46, {SLOT}\ns_cmp_eq_u32 s46, {3*SLOT}\ns_cselect_b32 s46, 0, s46")

    g("s_mov_b32 s52, 0\nK1_LPRO:")
    issue()
    g("s_add_u32 s52, s52, 1\ns_cmp_lt_u32 s52, 3\ns_cbranch_scc1 K1_LPRO")
    g("s_waitcnt vmcnt(22)\ns_barrier")
    g("s_mov_b32 s52, 1\nK1_LLOOP:")
    g("s_waitcnt vmcnt(11)\ns_barrier")
    issue()
    g("s_add_u32 s52, s52, 1\ns_cmp_lt_u32 s52, 6\ns_cbranch_scc1 K1_LLOOP")
    g("s_waitcnt vmcnt(11)\ns_barrier")
    g("s_waitcnt vmcnt(0)\ns_barrier")
    g("s_endpgm")


def k1_gate(g):
    g(f"s_lshl_b32 s40, s{sTY}, 3\ns_add_u32 s40, s40, s{sHG}\ns_lshl_b32 s40, s40, 3")
    g(f"s_lshl_b32 s41, s{sRB}, 7\ns_add_u32 s40, s40, s41\ns_lshl_b32 s41, s{sWV}, 1\ns_add_u32 s40, s40, s41")
    g("v_lshrrev_b32 v1, 5, v0\nv_add_u32 v1, s40, v1")
    g("v_and_b32 v2, 31, v0\nv_lshlrev_b32 v2, 5, v2")
    g("v_lshlrev_b32 v3, 10, v1\nv_add_u32 v3, v3, v2")
    g(f"buffer_load_dwordx4 v[4:7], v3, s[{S_X}:{S_X+3}], 0 offen")
    g(f"buffer_load_dwordx4 v[8:11], v3, s[{S_X}:{S_X+3}], 0 offen offset:16")
    g(f"buffer_load_dwordx4 v[12:15], v2, s[{S_GT}:{S_GT+3}], 0 offen")
    g(f"buffer_load_dwordx4 v[16:19], v2, s[{S_GT}:{S_GT+3}], 0 offen offset:16")
    g("v_mov_b32 v20, 0\ns_waitcnt vmcnt(0)")
    for i in range(8):
        g(f"v_dot2_f32_bf16 v20, v{4+i}, v{12+i}, v20")
    g("s_nop 3")
    for off in (0x041F, 0x081F, 0x101F, 0x201F, 0x401F):
        g(f"s_nop 1\nds_swizzle_b32 v21, v20 offset:{off:#x}\ns_waitcnt lgkmcnt(0)\nv_add_f32 v20, v20, v21")
    g(f"v_mul_f32 v20, 0xbfb8aa3b, v20\nv_exp_f32 v20, v20\ns_nop 0\nv_add_f32 v20, 1.0, v20\nv_rcp_f32 v20, v20")
    g(f"v_lshlrev_b32 v1, 2, v1\nv_add_u32 v1, {WS_G:#x}, v1")
    g("v_and_b32 v2, 31, v0\nv_cmp_eq_u32 vcc, 0, v2\ns_and_saveexec_b64 s[40:41], vcc")
    g(f"buffer_store_dword v20, v1, s[{S_WS}:{S_WS+3}], 0 offen\ns_mov_b64 exec, s[40:41]")


def slot_advance(g, sreg):
    g(f"s_add_u32 s{sreg}, s{sreg}, {SLOT}\ns_cmp_eq_u32 s{sreg}, {3*SLOT}\ns_cselect_b32 s{sreg}, 0, s{sreg}")


def interleave(g, mf, rd, start=0):
    rd = list(rd)
    for i, m in enumerate(mf):
        g(m)
        if i >= start and rd:
            g(rd.pop(0))
    for r in rd:
        g(r)


def k1_compB(g):
    ACC = 128
    Q, K, V = ACC, ACC + 32, ACC + 68
    F = [24, 72]
    XA0, XA1, WA = 4, 5, 6
    CX0, CX1, CW = 8, 9, 10
    g("K1_COMPB:")
    k1_gate(g)
    g("v_and_b32 v11, 15, v0\nv_lshrrev_b32 v12, 4, v0")
    g("v_lshrrev_b32 v13, 1, v11\nv_and_b32 v13, 7, v13")
    g("v_xor_b32 v14, v12, v13\nv_lshlrev_b32 v14, 4, v14\nv_lshlrev_b32 v15, 7, v11")
    g(f"v_add_u32 v{XA0}, v14, v15\nv_xor_b32 v{XA1}, 64, v{XA0}")
    g("v_lshrrev_b32 v13, 2, v0\nv_and_b32 v13, 3, v13\nv_and_b32 v14, 3, v0")
    g("v_lshlrev_b32 v15, 3, v12\nv_add_u32 v15, v15, v13\nv_lshlrev_b32 v15, 7, v15")
    g("v_and_b32 v16, 2, v13\nv_lshlrev_b32 v16, 1, v16\nv_and_b32 v17, 1, v12\nv_lshlrev_b32 v17, 1, v17\nv_or_b32 v16, v16, v17")
    g(f"v_lshrrev_b32 v17, 1, v14\ns_lshl_b32 s40, s{sWV}, 1\nv_add_u32 v17, s40, v17\nv_xor_b32 v17, v17, v16\nv_lshlrev_b32 v17, 4, v17")
    g(f"v_and_b32 v18, 1, v14\nv_lshlrev_b32 v18, 3, v18\nv_add_u32 v15, v15, v17\nv_add_u32 v15, v15, v18\nv_add_u32 v{WA}, {XB}, v15")
    for i in range(104):
        g(f"v_mov_b32 v{ACC+i}, 0")

    def reads(fs, kk):
        cx = CX1 if kk else CX0
        r = []
        for T in range(9):
            r.append(f"ds_read_b128 {v(F[fs]+4*T,4)}, v{cx} offset:{T*2048}")
        for t in range(3):
            for h in range(2):
                r.append(f"ds_read_b64_tr_b16 {v(F[fs]+36+4*t+2*h,2)}, v{CW} offset:{t*8192+kk*4096+h*512}")
        return r[9:] + r[:9]

    def mfmas(fs):
        m = []
        x = lambda T: v(F[fs] + 4 * T, 4)
        w = lambda t: v(F[fs] + 36 + 4 * t, 4)
        for T in range(9):
            if T < 8:
                m.append(f"v_mfma_f32_16x16x32_bf16 {v(Q+4*T,4)}, {w(0)}, {x(T)}, {v(Q+4*T,4)}")
            m.append(f"v_mfma_f32_16x16x32_bf16 {v(K+4*T,4)}, {w(1)}, {x(T)}, {v(K+4*T,4)}")
            m.append(f"v_mfma_f32_16x16x32_bf16 {v(V+4*T,4)}, {x(T)}, {w(2)}, {v(V+4*T,4)}")
        return m

    def setaddr():
        g(f"v_add_u32 v{CX0}, s44, v{XA0}\nv_add_u32 v{CX1}, s44, v{XA1}\nv_add_u32 v{CW}, s44, v{WA}")

    g("s_mov_b32 s44, 0\ns_mov_b32 s45, 0")
    g("s_barrier")
    setaddr()
    for r in reads(0, 0):
        g(r)
    g("K1B_LOOP:")
    g("s_waitcnt lgkmcnt(0)")
    interleave(g, mfmas(0), reads(1, 1))
    g("s_waitcnt lgkmcnt(0)")
    g("s_cmp_eq_u32 s45, 7\ns_cbranch_scc1 K1B_NOBAR\ns_barrier\nK1B_NOBAR:")
    slot_advance(g, 44)
    setaddr()
    interleave(g, mfmas(1), reads(0, 0))
    g("s_add_u32 s45, s45, 1\ns_cmp_lt_u32 s45, 8\ns_cbranch_scc1 K1B_LOOP")
    g("s_waitcnt lgkmcnt(0)\ns_nop 7\ns_nop 7")

    QB, KB = 24, 40
    VB = [60, 70]
    for T in range(8):
        g(f"v_cvt_pk_bf16_f32 v{QB+2*T}, v{Q+4*T}, v{Q+4*T+1}\nv_cvt_pk_bf16_f32 v{QB+2*T+1}, v{Q+4*T+2}, v{Q+4*T+3}")
    for T in range(9):
        g(f"v_cvt_pk_bf16_f32 v{KB+2*T}, v{K+4*T}, v{K+4*T+1}\nv_cvt_pk_bf16_f32 v{KB+2*T+1}, v{K+4*T+2}, v{K+4*T+3}")
    for T in range(9):
        dsts = [VB[0], VB[1]] if T == 8 else [VB[T & 1] + 2 + 2 * (T >> 1)]
        for d in dsts:
            g(f"v_cvt_pk_bf16_f32 v{d}, v{V+4*T}, v{V+4*T+1}\nv_cvt_pk_bf16_f32 v{d+1}, v{V+4*T+2}, v{V+4*T+3}")
    BS, B0, B1 = 80, 84, 88
    M, MN = 92, 94
    ONES = 96
    sM = 56
    g("v_lshlrev_b32 v13, 2, v12")
    g(f"v_mov_b32 v14, {NEGBIG:#x}\nv_mov_b32 v15, 0")
    g(f"s_cmp_eq_u32 s{sRB}, 0\ns_cselect_b32 s40, 1, 0")
    g(f"v_mov_b32 v{M}, 0\nv_mov_b32 v{M+1}, 0")
    for r in range(4):
        g(f"v_add_u32 v16, {r}, v13")
        g(f"v_cmp_le_u32 s[{sM+2*r}:{sM+2*r+1}], v16, v11")
        g("v_add_u32 v17, 7, v16\nv_cmp_ge_u32 s[42:43], v17, v11")
        g("v_add_u32 v17, 9, v11\nv_cmp_ge_u32 s[44:45], v16, v17")
        g("v_cmp_ge_u32 s[46:47], 7, v16")
        g(f"s_and_b64 s[42:43], s[42:43], s[{sM+2*r}:{sM+2*r+1}]")
        g(f"s_andn2_b64 s[46:47], s[46:47], s[{sM+2*r}:{sM+2*r+1}]")
        g("s_or_b64 s[48:49], s[42:43], s[44:45]")
        g(f"v_cndmask_b32 v{BS+r}, v14, v15, s[48:49]")
        g("s_cmp_eq_u32 s40, 1\ns_cselect_b64 s[44:45], 0, s[44:45]\ns_cselect_b64 s[46:47], 0, s[46:47]")
        g("s_or_b64 s[48:49], s[42:43], s[46:47]")
        g(f"v_cndmask_b32 v{B0+r}, v14, v15, s[48:49]")
        g("s_or_b64 s[48:49], s[42:43], s[44:45]")
        g(f"v_cndmask_b32 v{B1+r}, v14, v15, s[48:49]")
        mk = 0xffff if (r & 1) == 0 else 0xffff0000
        g(f"v_mov_b32 v17, {mk:#x}\nv_cndmask_b32 v17, v15, v17, s[{sM+2*r}:{sM+2*r+1}]\nv_or_b32 v{M+(r>>1)}, v{M+(r>>1)}, v17")
    g(f"v_not_b32 v{MN}, v{M}\nv_not_b32 v{MN+1}, v{M+1}")
    for i in range(4):
        g(f"v_mov_b32 v{ONES+i}, 0x3f803f80")
    g(f"s_mov_b32 s41, {0x3eb8aa3b:#x}")
    g(f"s_lshl_b32 s42, s{sRB}, 17\ns_lshl_b32 s43, s{sHG}, 12\ns_add_u32 s42, s42, s43\ns_lshl_b32 s43, s{sWV}, 10\ns_add_u32 s42, s42, s43")
    g(f"s_add_u32 s42, s42, {WS_OB:#x}\nv_lshlrev_b32 v19, 4, v0\nv_add_u32 v19, s42, v19")
    SC, SP, TT, PP, BOP, OO, SUM, RES = 100, 104, 108, 112, 116, 120, 124, 232
    for b in range(4):
        for p in range(2):
            T = 2 * b + p
            prev = 8 if b == 0 else T - 2
            bias = (B0 if p == 0 else B1) if b == 0 else BS
            g(f"v_mfma_f32_16x16x16_bf16 {v(SC,4)}, {v(KB+2*T,2)}, {v(QB+2*T,2)}, 0")
            g(f"v_mfma_f32_16x16x16_bf16 {v(SP,4)}, {v(KB+2*prev,2)}, {v(QB+2*T,2)}, 0")
            g("s_nop 7\ns_nop 1")
            for r in range(4):
                g(f"v_cndmask_b32 v{TT+r}, v{SP+r}, v{SC+r}, s[{sM+2*r}:{sM+2*r+1}]")
            for r in range(4):
                g(f"v_fma_f32 v{TT+r}, v{TT+r}, s41, v{bias+r}")
            g(f"v_max3_f32 v20, v{TT}, v{TT+1}, v{TT+2}\nv_max_f32 v20, v20, v{TT+3}")
            g("v_mov_b32 v21, v20\ns_nop 1\nv_permlane32_swap_b32 v20, v21\ns_nop 1\nv_max_f32 v20, v20, v21")
            g("v_mov_b32 v21, v20\ns_nop 1\nv_permlane16_swap_b32 v20, v21\ns_nop 1\nv_max_f32 v20, v20, v21")
            for r in range(4):
                g(f"v_sub_f32 v{PP+r}, v{TT+r}, v20")
            for r in range(4):
                g(f"v_exp_f32 v{PP+r}, v{PP+r}")
            g("s_nop 0")
            g(f"v_cvt_pk_bf16_f32 v22, v{PP}, v{PP+1}\nv_cvt_pk_bf16_f32 v23, v{PP+2}, v{PP+3}")
            g(f"v_and_b32 v{BOP}, v22, v{MN}\nv_and_b32 v{BOP+1}, v23, v{MN+1}\nv_and_b32 v{BOP+2}, v22, v{M}\nv_and_b32 v{BOP+3}, v23, v{M+1}")
            g("s_nop 1")
            g(f"v_mfma_f32_16x16x32_bf16 {v(OO,4)}, {v(VB[p]+2*b,4)}, {v(BOP,4)}, 0")
            g(f"v_mfma_f32_16x16x32_bf16 {v(SUM,4)}, {v(ONES,4)}, {v(BOP,4)}, 0")
            g("s_nop 7\ns_nop 1")
            g(f"v_rcp_f32 v20, v{SUM}\ns_nop 0")
            for r in range(4):
                g(f"v_mul_f32 v{OO+r}, v{OO+r}, v20")
            g(f"v_cvt_pk_bf16_f32 v{RES+2*p}, v{OO}, v{OO+1}\nv_cvt_pk_bf16_f32 v{RES+2*p+1}, v{OO+2}, v{OO+3}")
        g("s_nop 1")
        g(f"v_permlane16_swap_b32 v{RES}, v{RES+2}\nv_permlane16_swap_b32 v{RES+1}, v{RES+3}")
        g("s_nop 1")
        g(f"buffer_store_dwordx4 {v(RES,4)}, v19, s[{S_WS}:{S_WS+3}], 0 offen")
        g(f"v_add_u32 v19, {32*1024}, v19\ns_nop 1")
    g("s_endpgm")


def phi(g, r, t1, t2):
    g(f"v_mul_f32 v{t1}, {LOG2E:#x}, v{r}\nv_exp_f32 v{t1}, v{t1} clamp\nv_max_f32 v{t2}, 0, v{r}")
    g(f"v_add_f32 v{r}, v{t1}, v{t2}\nv_add_f32 v{r}, {EPS:#x}, v{r}")


def k1_compA(g):
    ACC = 128
    Q, K, V = ACC, ACC + 32, ACC + 64
    F = [24, 64]
    XA = [4, 5, 6, 7]
    WA = 8
    CX = [10, 11, 12, 13]
    CW = 14
    g("K1_COMPA:")
    k1_gate(g)
    g(f"s_lshr_b32 s46, s{sWV}, 1\ns_and_b32 s47, s{sWV}, 1")
    g("v_and_b32 v15, 31, v0\nv_lshrrev_b32 v16, 5, v0")
    g("v_lshrrev_b32 v17, 1, v15\nv_and_b32 v17, 7, v17")
    g("v_xor_b32 v17, v17, v16\nv_lshlrev_b32 v17, 4, v17")
    g("s_lshl_b32 s40, s47, 13\nv_lshlrev_b32 v18, 7, v15\nv_add_u32 v18, s40, v18")
    g(f"v_add_u32 v{XA[0]}, v17, v18")
    for ks in range(1, 4):
        g(f"v_xor_b32 v{XA[ks]}, {ks*32}, v{XA[0]}")
    g("v_lshrrev_b32 v17, 2, v0\nv_and_b32 v17, 3, v17\nv_and_b32 v18, 3, v0")
    g("v_lshlrev_b32 v19, 3, v16\nv_add_u32 v19, v19, v17\nv_lshlrev_b32 v19, 7, v19")
    g("v_and_b32 v20, 2, v17\nv_lshlrev_b32 v20, 1, v20\nv_lshlrev_b32 v21, 1, v16\nv_or_b32 v20, v20, v21")
    g("v_lshrrev_b32 v21, 4, v0\nv_and_b32 v21, 1, v21\nv_lshlrev_b32 v21, 1, v21\nv_lshrrev_b32 v22, 1, v18\nv_add_u32 v21, v21, v22")
    g("s_lshl_b32 s40, s46, 2\nv_add_u32 v21, s40, v21\nv_xor_b32 v21, v21, v20\nv_lshlrev_b32 v21, 4, v21")
    g(f"v_and_b32 v22, 1, v18\nv_lshlrev_b32 v22, 3, v22\nv_add_u32 v19, v19, v21\nv_add_u32 v19, v19, v22\nv_add_u32 v{WA}, {XB}, v19")
    for i in range(96):
        g(f"v_mov_b32 v{ACC+i}, 0")

    def reads(fs, kk):
        r = []
        for k2 in range(2):
            ks = 2 * kk + k2
            for t in range(3):
                for h in range(2):
                    r.append(f"ds_read_b64_tr_b16 {v(F[fs]+16+12*k2+4*t+2*h,2)}, v{CW} offset:{t*8192+ks*2048+h*512}")
            for bb in range(2):
                r.append(f"ds_read_b128 {v(F[fs]+8*k2+4*bb,4)}, v{CX[ks]} offset:{bb*4096}")
        return r

    def mfmas(fs):
        m = []
        for k2 in range(2):
            x = lambda bb: v(F[fs] + 8 * k2 + 4 * bb, 4)
            w = lambda t: v(F[fs] + 16 + 12 * k2 + 4 * t, 4)
            for bb in range(2):
                m.append(f"v_mfma_f32_32x32x16_bf16 {v(Q+16*bb,16)}, {w(0)}, {x(bb)}, {v(Q+16*bb,16)}")
                m.append(f"v_mfma_f32_32x32x16_bf16 {v(K+16*bb,16)}, {x(bb)}, {w(1)}, {v(K+16*bb,16)}")
                m.append(f"v_mfma_f32_32x32x16_bf16 {v(V+16*bb,16)}, {x(bb)}, {w(2)}, {v(V+16*bb,16)}")
        return m

    def inter2(mf, rd):
        rd = list(rd)
        for m in mf:
            g(m)
            for _ in range(2):
                if rd:
                    g(rd.pop(0))
        for r in rd:
            g(r)

    def setaddr():
        for ks in range(4):
            g(f"v_add_u32 v{CX[ks]}, s44, v{XA[ks]}")
        g(f"v_add_u32 v{CW}, s44, v{WA}")

    g("s_mov_b32 s44, 0\ns_mov_b32 s45, 0")
    g("s_barrier")
    setaddr()
    for r in reads(0, 0):
        g(r)
    g("K1A_LOOP:")
    g("s_waitcnt lgkmcnt(0)")
    inter2(mfmas(0), reads(1, 1))
    g("s_waitcnt lgkmcnt(0)")
    g("s_cmp_eq_u32 s45, 7\ns_cbranch_scc1 K1A_NOBAR\ns_barrier\nK1A_NOBAR:")
    slot_advance(g, 44)
    setaddr()
    inter2(mfmas(1), reads(0, 0))
    g("s_add_u32 s45, s45, 1\ns_cmp_lt_u32 s45, 8\ns_cbranch_scc1 K1A_LOOP")
    g("s_waitcnt lgkmcnt(0)\ns_nop 7\ns_nop 7\ns_nop 7")

    g(f"s_lshl_b32 s42, s{sRB}, 17\ns_lshl_b32 s43, s47, 16\ns_add_u32 s42, s42, s43\ns_lshl_b32 s43, s{sHG}, 12\ns_add_u32 s42, s42, s43")
    g(f"s_lshl_b32 s43, s46, 11\ns_add_u32 s42, s42, s43\nv_lshlrev_b32 v19, 4, v0\nv_add_u32 v19, s42, v19")
    if WS_PQ:
        g(f"v_add_u32 v19, {WS_PQ:#x}, v19")
    for bb in range(2):
        for i in range(16):
            phi(g, Q + 16 * bb + i, 20, 21)
        for hb in range(2):
            d = 24 + 4 * hb
            for i in range(4):
                g(f"v_cvt_pk_bf16_f32 v{d+i}, v{Q+16*bb+8*hb+2*i}, v{Q+16*bb+8*hb+2*i+1}")
            g("s_nop 1")
            g(f"buffer_store_dwordx4 {v(d,4)}, v19, s[{S_WS}:{S_WS+3}], 0 offen offset:{hb*1024}")
        g(f"v_add_u32 v19, 32768, v19\ns_nop 1")
    KB, VBf = 32, 48
    for bb in range(2):
        for i in range(16):
            phi(g, K + 16 * bb + i, 20, 21)
        for i in range(8):
            g(f"v_cvt_pk_bf16_f32 v{KB+8*bb+i}, v{K+16*bb+2*i}, v{K+16*bb+2*i+1}")
            g(f"v_cvt_pk_bf16_f32 v{VBf+8*bb+i}, v{V+16*bb+2*i}, v{V+16*bb+2*i+1}")
    ONES = 64
    for i in range(4):
        g(f"v_mov_b32 v{ONES+i}, 0x3f803f80")
    KVA, ZA = 72, 88
    g("s_nop 1")
    first = True
    for bb in range(2):
        for hh in range(2):
            c1 = "0" if first else v(KVA, 16)
            c2 = "0" if first else v(ZA, 16)
            g(f"v_mfma_f32_32x32x16_bf16 {v(KVA,16)}, {v(KB+8*bb+4*hh,4)}, {v(VBf+8*bb+4*hh,4)}, {c1}")
            g(f"v_mfma_f32_32x32x16_bf16 {v(ZA,16)}, {v(KB+8*bb+4*hh,4)}, {v(ONES,4)}, {c2}")
            first = False
    g("s_nop 7\ns_nop 7")
    g("v_and_b32 v20, 16, v0\nv_cmp_ne_u32 vcc, 0, v20\ns_nop 1")
    for j in range(8):
        g(f"v_cndmask_b32 v{104+j}, v{KVA+j}, v{KVA+8+j}, vcc")
        g(f"v_cndmask_b32 v{112+j}, v{ZA+j}, v{ZA+8+j}, vcc")
    g("v_lshrrev_b32 v20, 4, v0\nv_and_b32 v20, 1, v20")
    g("s_lshl_b32 s40, s46, 1\nv_add_u32 v20, s40, v20")
    g("v_lshrrev_b32 v21, 5, v0\nv_and_b32 v22, 15, v0")
    g(f"s_mul_i32 s40, s47, 4352\ns_add_u32 s40, s40, {SCR}")
    g("v_lshlrev_b32 v23, 10, v20\nv_lshlrev_b32 v24, 9, v21\nv_add_u32 v23, v23, v24\nv_lshlrev_b32 v24, 5, v22\nv_add_u32 v23, v23, v24\nv_add_u32 v23, s40, v23")
    g("ds_write_b128 v23, v[104:107]\nds_write_b128 v23, v[108:111] offset:16")
    g("v_lshlrev_b32 v23, 6, v20\nv_lshlrev_b32 v24, 5, v21\nv_add_u32 v23, v23, v24\nv_add_u32 v23, s40, v23")
    g("v_cmp_eq_u32 vcc, 0, v22\ns_and_saveexec_b64 s[48:49], vcc")
    g("ds_write_b128 v23, v[112:115] offset:4096\nds_write_b128 v23, v[116:119] offset:4112")
    g("s_mov_b64 exec, s[48:49]")
    g("s_waitcnt lgkmcnt(0)\ns_barrier")
    g(f"s_lshl_b32 s40, s{sWV}, 6\nv_add_u32 v20, s40, v0\nv_lshlrev_b32 v20, 2, v20")
    g(f"v_add_u32 v21, {SCR}, v20")
    for m in range(4):
        g(f"ds_read_b32 v{24+m}, v21 offset:{m*1024}\nds_read_b32 v{28+m}, v21 offset:{4352+m*1024}")
    g(f"ds_read_b32 v32, v21 offset:4096\nds_read_b32 v33, v21 offset:{4352+4096}")
    g(f"s_lshl_b32 s40, s{sHG}, 12\ns_add_u32 s40, s40, {WS_KV:#x}\nv_add_u32 v22, s40, v20")
    g(f"s_lshl_b32 s40, s{sHG}, 8\ns_add_u32 s40, s40, {WS_KV+0x8000:#x}\nv_add_u32 v23, s40, v20")
    g("s_waitcnt lgkmcnt(0)")
    for m in range(4):
        g(f"v_add_f32 v{24+m}, v{24+m}, v{28+m}")
    g("v_add_f32 v32, v32, v33")
    for m in range(4):
        g(f"buffer_atomic_add_f32 v{24+m}, v22, s[{S_WS}:{S_WS+3}], 0 offen offset:{m*1024}")
    g(f"s_cmp_lg_u32 s{sWV}, 0\ns_cbranch_scc1 K1A_DONE")
    g(f"buffer_atomic_add_f32 v32, v23, s[{S_WS}:{S_WS+3}], 0 offen")
    g("K1A_DONE:\ns_endpgm")


def gen_k1(g):
    name = "k1_qkv_kernel"
    kernel_header(g, name)
    g("s_cmp_ge_u32 s2, 256\ns_cbranch_scc1 K1_END")
    g("s_load_dwordx4 s[4:7], s[0:1], 0\ns_load_dwordx2 s[8:9], s[0:1], 32\ns_load_dwordx2 s[10:11], s[0:1], 48\ns_load_dwordx4 s[12:15], s[0:1], 64")
    g("s_and_b32 s40, s2, 7\ns_lshr_b32 s41, s2, 3")
    g(f"s_and_b32 s{sRB}, s40, 1\ns_lshl_b32 s{sRB}, s{sRB}, 3\ns_and_b32 s42, s41, 7\ns_add_u32 s{sRB}, s{sRB}, s42")
    g(f"s_lshr_b32 s43, s41, 3\ns_lshr_b32 s{sTY}, s43, 1")
    g(f"s_lshr_b32 s{sHG}, s40, 1\ns_lshl_b32 s{sHG}, s{sHG}, 1\ns_and_b32 s44, s43, 1\ns_add_u32 s{sHG}, s{sHG}, s44")
    g(f"s_lshl_b32 s{sROT}, s43, 1\ns_add_u32 s{sROT}, s{sROT}, s{sRB}\ns_and_b32 s{sROT}, s{sROT}, 7")
    g(f"v_lshrrev_b32 v1, 6, v0\ns_nop 0\nv_readfirstlane_b32 s{sWV}, v1\nv_and_b32 v0, 63, v0")
    g("s_waitcnt lgkmcnt(0)")
    srd(g, S_X, 4, 5, 0x200000)
    g(f"s_cmp_eq_u32 s{sTY}, 0\ns_cselect_b32 s{S_W}, s6, s8\ns_cselect_b32 s{S_W+1}, s7, s9\ns_mov_b32 s{S_W+2}, 0x180000\ns_mov_b32 s{S_W+3}, 0x20000")
    srd(g, S_WS, 14, 15, WS_SIZE)
    srd(g, S_GT, 10, 11, 1024)
    g(f"s_cmp_ge_u32 s{sWV}, 4\ns_cbranch_scc1 K1_LOADER")
    g(f"s_cmp_eq_u32 s{sTY}, 0\ns_cbranch_scc1 K1_COMPA")
    k1_compB(g)
    k1_compA(g)
    k1_loader(g)
    g("K1_END:\ns_endpgm")
    return kernel_desc(name, 256, 96)


KVB = 131072
K2_LDS = KVB + 17408


def gen_k2(g):
    name = "k2_out_kernel"
    kernel_header(g, name)
    S_A, S_B, S_WS2, S_O = 16, 20, 24, 28
    g("s_cmp_ge_u32 s2, 256\ns_cbranch_scc1 K2_END")
    g("s_load_dwordx2 s[4:5], s[0:1], 16\ns_load_dwordx2 s[6:7], s[0:1], 40\ns_load_dwordx2 s[8:9], s[0:1], 56\ns_load_dwordx2 s[10:11], s[0:1], 72")
    g("s_and_b32 s40, s2, 7\ns_lshr_b32 s41, s2, 3\ns_lshl_b32 s32, s40, 2\ns_and_b32 s42, s41, 3\ns_add_u32 s32, s32, s42\ns_lshr_b32 s33, s41, 2")
    g("v_lshrrev_b32 v1, 6, v0\nv_mov_b32 v2, v0\nv_readfirstlane_b32 s36, v1\nv_and_b32 v0, 63, v0")
    g("s_waitcnt lgkmcnt(0)")
    srd(g, S_A, 4, 5, 0x80000)
    srd(g, S_B, 6, 7, 0x80000)
    srd(g, S_WS2, 10, 11, WS_SIZE)
    srd(g, S_O, 8, 9, 0x200000)
    g("s_lshr_b32 s37, s36, 2\ns_and_b32 s38, s36, 1\ns_lshr_b32 s39, s36, 1\ns_and_b32 s39, s39, 1")
    ACT = 64
    g(f"s_lshl_b32 s40, s32, 16\ns_lshl_b32 s41, s38, 15\ns_add_u32 s40, s40, s41\ns_lshl_b32 s41, s39, 14\ns_add_u32 s40, s40, s41")
    g(f"s_mul_i32 s41, s37, {WS_OB-WS_PQ:#x}\ns_add_u32 s40, s40, s41")
    g("v_lshlrev_b32 v3, 4, v0\nv_add_u32 v3, s40, v3")
    for hh in range(16):
        g(f"s_mov_b32 s42, {(hh//4)*4096}")
        off = (hh % 4) * 1024
        g(f"buffer_load_dwordx4 {v(ACT+4*hh,4)}, v3, s[{S_WS2}:{S_WS2+3}], s42 offen offset:{off}")
    g("v_and_b32 v4, 15, v0\nv_lshlrev_b32 v4, 1, v4\nv_lshrrev_b32 v5, 4, v0\nv_and_b32 v5, 1, v5\nv_add_u32 v4, v4, v5")
    g("s_lshl_b32 s40, s32, 6\ns_lshl_b32 s41, s38, 5\ns_add_u32 s40, s40, s41\nv_add_u32 v4, s40, v4")
    g(f"v_lshlrev_b32 v5, 2, v4\nv_add_u32 v5, {WS_G:#x}, v5\nbuffer_load_dword v6, v5, s[{S_WS2}:{S_WS2+3}], 0 offen")
    g(f"v_lshlrev_b32 v7, 4, v2\nv_add_u32 v7, {WS_KV:#x}, v7")
    for m in range(4):
        g(f"s_mov_b32 s42, {m*8192}\nbuffer_load_dwordx4 {v(128+4*m,4)}, v7, s[{S_WS2}:{S_WS2+3}], s42 offen")
    g("s_mov_b32 s42, 32768\nv_cmp_gt_u32 vcc, 128, v2\ns_and_saveexec_b64 s[44:45], vcc")
    g(f"buffer_load_dwordx4 v[144:147], v7, s[{S_WS2}:{S_WS2+3}], s42 offen\ns_mov_b64 exec, s[44:45]")
    g("v_lshrrev_b32 v8, 3, v0\nv_and_b32 v9, 7, v0\nv_and_b32 v10, 2, v8\nv_lshlrev_b32 v10, 1, v10\nv_xor_b32 v10, v10, v9\nv_lshlrev_b32 v10, 4, v10")
    g("s_lshl_b32 s40, s36, 3\nv_add_u32 v8, s40, v8\nv_lshlrev_b32 v8, 10, v8\nv_add_u32 v8, v8, v10\ns_lshl_b32 s40, s33, 7\nv_add_u32 v8, s40, v8")
    g("s_lshl_b32 s43, s36, 10")
    for br, sr in ((0, S_A), (1, S_B)):
        for m in range(8):
            g(f"s_mov_b32 s42, {m*65536}\ns_add_u32 m0, s43, {br*65536 + m*8192}\ns_nop 0")
            g(f"buffer_load_dwordx4 v8, s[{sr}:{sr+3}], s42 offen lds")
    g("s_waitcnt vmcnt(16)")
    g(f"v_lshlrev_b32 v9, 3, v2\nv_add_u32 v9, {KVB}, v9")
    for m in range(5):
        g(f"v_cvt_pk_bf16_f32 v{148+2*m}, v{128+4*m}, v{129+4*m}\nv_cvt_pk_bf16_f32 v{149+2*m}, v{130+4*m}, v{131+4*m}")
    for m in range(4):
        g(f"ds_write_b64 v9, {v(148+2*m,2)} offset:{m*4096}")
    g("v_cmp_gt_u32 vcc, 128, v2\ns_and_saveexec_b64 s[44:45], vcc")
    g(f"ds_write_b64 v9, v[156:157] offset:16384\ns_mov_b64 exec, s[44:45]")
    g("s_waitcnt vmcnt(0) lgkmcnt(0)\ns_barrier")
    g("v_lshrrev_b32 v10, 5, v0\nv_lshrrev_b32 v11, 2, v0\nv_and_b32 v11, 3, v11\nv_and_b32 v12, 3, v0")
    g("s_cmp_eq_u32 s37, 0\ns_cselect_b32 s40, 2, 3")
    g("v_lshlrev_b32 v13, s40, v10\nv_add_u32 v13, v13, v11\nv_lshlrev_b32 v13, 7, v13")
    g("v_and_b32 v14, 1, v12\nv_lshlrev_b32 v14, 1, v14\nv_lshrrev_b32 v15, 4, v0\nv_and_b32 v15, 1, v15\nv_add_u32 v14, v14, v15")
    g("v_and_b32 v15, 2, v11\nv_lshlrev_b32 v15, 1, v15\nv_xor_b32 v14, v14, v15\nv_lshlrev_b32 v14, 4, v14")
    g("v_lshrrev_b32 v15, 1, v12\nv_lshlrev_b32 v15, 3, v15\nv_add_u32 v13, v13, v14\nv_add_u32 v13, v13, v15")
    g("s_lshl_b32 s40, s37, 16\ns_lshl_b32 s41, s39, 15\ns_add_u32 s40, s40, s41\nv_add_u32 v16, s40, v13\nv_xor_b32 v17, 64, v16")
    ACCR = 160
    for i in range(32):
        g(f"v_mov_b32 v{ACCR+i}, 0")
    g("s_cmp_eq_u32 s37, 0\ns_cbranch_scc0 K2_BR_B")
    g("v_and_b32 v18, 31, v0\nv_lshlrev_b32 v19, 4, v18\nv_lshlrev_b32 v20, 8, v10\nv_add_u32 v19, v19, v20")
    g(f"s_lshl_b32 s40, s39, 13\ns_add_u32 s40, s40, {KVB}\nv_add_u32 v19, s40, v19")
    g(f"v_lshlrev_b32 v20, 4, v10\ns_lshl_b32 s40, s39, 9\ns_add_u32 s40, s40, {KVB+16384}\nv_add_u32 v20, s40, v20")
    g("v_cmp_gt_u32 vcc, 16, v18\nv_mov_b32 v21, 32\nv_mov_b32 v22, 512\ns_nop 0\nv_cndmask_b32 v19, v20, v19, vcc\nv_cndmask_b32 v21, v21, v22, vcc")
    D1, BO, WF, AOP = 24, 40, 44, 52
    for hh in range(16):
        g(f"ds_read_b128 {v(AOP,4)}, v19")
        for ct in range(2):
            g(f"ds_read_b64_tr_b16 {v(WF+4*ct,2)}, v{16+ct} offset:{hh*2048}\nds_read_b64_tr_b16 {v(WF+4*ct+2,2)}, v{16+ct} offset:{hh*2048+1024}")
        g("v_add_u32 v19, v19, v21\ns_waitcnt lgkmcnt(0)")
        g(f"v_mfma_f32_32x32x16_bf16 {v(D1,16)}, {v(AOP,4)}, {v(ACT+4*hh,4)}, 0")
        g("s_nop 7\ns_nop 4")
        g(f"v_add_f32 v23, {EPS:#x}, v{D1+8}\nv_rcp_f32 v23, v23\ns_nop 0")
        for j in range(8):
            g(f"v_mul_f32 v{D1+j}, v{D1+j}, v23")
        for j in range(4):
            g(f"v_cvt_pk_bf16_f32 v{BO+j}, v{D1+2*j}, v{D1+2*j+1}")
        g("s_nop 1")
        for ct in range(2):
            g(f"v_mfma_f32_32x32x16_bf16 {v(ACCR+16*ct,16)}, {v(WF+4*ct,4)}, {v(BO,4)}, {v(ACCR+16*ct,16)}")
    g("s_nop 7\ns_nop 7")
    for i in range(32):
        g(f"v_mul_f32 v{ACCR+i}, v{ACCR+i}, v6")
    g("s_branch K2_RED")
    g("K2_BR_B:")
    WF = 44
    for hh in range(16):
        for ct in range(2):
            g(f"ds_read_b64_tr_b16 {v(WF+4*ct,2)}, v{16+ct} offset:{hh*2048}\nds_read_b64_tr_b16 {v(WF+4*ct+2,2)}, v{16+ct} offset:{hh*2048+512}")
        g("s_waitcnt lgkmcnt(0)")
        for ct in range(2):
            g(f"v_mfma_f32_32x32x16_bf16 {v(ACCR+16*ct,16)}, {v(WF+4*ct,4)}, {v(ACT+4*hh,4)}, {v(ACCR+16*ct,16)}")
    g("s_nop 7\ns_nop 7")
    g("v_sub_f32 v6, 1.0, v6")
    for i in range(32):
        g(f"v_mul_f32 v{ACCR+i}, v{ACCR+i}, v6")
    g("K2_RED:")
    g("s_barrier")
    g("s_lshl_b32 s40, s36, 13\nv_lshlrev_b32 v18, 4, v0\nv_add_u32 v19, s40, v18")
    for q in range(8):
        g(f"ds_write_b128 v19, {v(ACCR+4*q,4)} offset:{q*1024}")
    g("s_waitcnt lgkmcnt(0)\ns_barrier")
    g("s_cmp_ge_u32 s36, 4\ns_cbranch_scc1 K2_END")
    g("s_lshl_b32 s40, s38, 13\ns_lshl_b32 s41, s39, 12\ns_add_u32 s40, s40, s41\nv_add_u32 v19, s40, v18")
    for q in range(4):
        for src in range(4):
            g(f"ds_read_b128 {v(64+16*src+4*q,4)}, v19 offset:{src*16384+q*1024}")
    g("s_waitcnt lgkmcnt(0)")
    for i in range(16):
        g(f"v_add_f32 v{64+i}, v{64+i}, v{80+i}\nv_add_f32 v{96+i}, v{96+i}, v{112+i}\nv_add_f32 v{64+i}, v{64+i}, v{96+i}")
    for i in range(8):
        g(f"v_cvt_pk_bf16_f32 v{128+i}, v{64+2*i}, v{65+2*i}")
    g("v_lshlrev_b32 v20, 10, v4\nv_lshrrev_b32 v21, 5, v0\nv_lshlrev_b32 v21, 5, v21\nv_add_u32 v20, v20, v21")
    g("s_lshl_b32 s40, s33, 7\ns_lshl_b32 s41, s39, 6\ns_add_u32 s40, s40, s41\nv_add_u32 v20, s40, v20")
    g(f"buffer_store_dwordx4 v[128:131], v20, s[{S_O}:{S_O+3}], 0 offen\nbuffer_store_dwordx4 v[132:135], v20, s[{S_O}:{S_O+3}], 0 offen offset:16")
    g("K2_END:\ns_endpgm")
    return kernel_desc(name, 256, 96)


def main(path):
    g = G()
    hdr = open("cdna_kernels/" + NAME + ".s.ref").read().split("; Override launch geometry")[0]
    out = hdr
    out += "; @launch kernel=k0_zero_kernel grid=(9,1,1) block=(256,1,1) lds=0\n"
    out += f"; @launch kernel=k1_qkv_kernel grid=(256,1,1) block=(512,1,1) lds={K1_LDS}\n"
    out += f"; @launch kernel=k2_out_kernel grid=(256,1,1) block=(512,1,1) lds={K2_LDS}\n"
    out += '.amdgcn_target "amdgcn-amd-amdhsa--gfx950"\n.text\n'
    descs = ""
    descs += gen_k0(g)
    descs += gen_k1(g)
    descs += gen_k2(g)
    out += g.text() + descs
    open(path, "w").write(out)


if __name__ == "__main__":
    main(sys.argv[1] if len(sys.argv) > 1 else "cdna_kernels/" + NAME + ".s")
```

```python
import re

TRANS = ("v_exp_f32", "v_log_f32", "v_rcp_f32", "v_rsq_f32", "v_sqrt_f32", "v_sin_f32", "v_cos_f32")


def v(i, n=1):
    return f"v{i}" if n == 1 else f"v[{i}:{i+n-1}]"


def s(i, n=1):
    return f"s{i}" if n == 1 else f"s[{i}:{i+n-1}]"


_reg_re = re.compile(r"^-?\|?(abs\()?([vs])(?:(\d+)|\[(\d+):(\d+)\])\)?\|?$")


def regs_of(op):
    op = op.strip()
    if op == "vcc":
        return {("s", "vcc")}
    if op in ("exec", "exec_lo", "exec_hi"):
        return {("s", "exec")}
    if op == "m0":
        return {("s", "m0")}
    m = _reg_re.match(op)
    if not m:
        return set()
    kind = m.group(2)
    if m.group(3) is not None:
        return {(kind, int(m.group(3)))}
    return {(kind, i) for i in range(int(m.group(4)), int(m.group(5)) + 1)}


def split_ops(rest):
    ops, depth, cur = [], 0, ""
    for ch in rest:
        if ch == "[":
            depth += 1
        if ch == "]":
            depth -= 1
        if ch == "," and depth == 0:
            ops.append(cur.strip())
            cur = ""
        else:
            cur += ch
    if cur.strip():
        ops.append(cur.strip())
    mods = ""
    if ops:
        parts = ops[-1].split()
        ops[-1] = parts[0]
        mods = " ".join(parts[1:])
    return ops, mods


class Ins:
    __slots__ = ("text", "mn", "kind", "wr", "rd", "passes", "srcc", "srcab", "trans", "dot", "wide_store", "sdata", "dpp", "lds_dma", "nops")


def classify(text):
    t = text.split(";")[0].strip()
    parts = t.split(None, 1)
    mn = parts[0]
    rest = parts[1] if len(parts) > 1 else ""
    ops, mods = split_ops(rest)
    I = Ins()
    I.text, I.mn = text, mn
    I.wr, I.rd = set(), set()
    I.passes, I.srcc, I.srcab = 0, set(), set()
    I.trans = I.dot = I.wide_store = I.dpp = I.lds_dma = False
    I.sdata = set()
    I.nops = 1
    base = mn.replace("_e32", "").replace("_e64", "")
    if mn == "s_nop":
        I.kind = "nop"
        I.nops = int(ops[0], 0) + 1
    elif mn.startswith("v_mfma"):
        I.kind = "mfma"
        I.wr = regs_of(ops[0])
        I.srcab = regs_of(ops[1]) | regs_of(ops[2])
        I.srcc = regs_of(ops[3])
        I.rd = I.srcab | I.srcc
        I.passes = 8 if "32x32" in mn else 4
    elif mn.startswith("v_"):
        I.kind = "valu"
        if base.startswith("v_cmp"):
            I.wr = regs_of(ops[0])
            for o in ops[1:]:
                I.rd |= regs_of(o)
        elif base.startswith("v_permlane") and "swap" in base:
            I.kind = "permlane"
            I.wr = regs_of(ops[0]) | regs_of(ops[1])
            I.rd = set(I.wr)
        elif base in ("v_readfirstlane_b32", "v_readlane_b32"):
            I.kind = "readlane"
            I.wr = regs_of(ops[0])
            for o in ops[1:]:
                I.rd |= regs_of(o)
        else:
            I.wr = regs_of(ops[0])
            for o in ops[1:]:
                I.rd |= regs_of(o)
            if base in ("v_add_co_u32", "v_sub_co_u32", "v_addc_co_u32"):
                I.wr |= regs_of(ops[1])
            if base.startswith("v_fmac") or base.startswith("v_dot2c") or base.startswith("v_pk_fmac"):
                I.rd |= I.wr
            if base == "v_cndmask_b32" and len(ops) == 3:
                I.rd |= {("s", "vcc")}
            if base in TRANS:
                I.trans = True
            if base.startswith("v_dot"):
                I.dot = True
            if "row_" in mods or "quad_perm" in mods or "row_" in rest:
                I.dpp = True
    elif mn.startswith("ds_"):
        I.kind = "ds"
        if mn.startswith("ds_read") or mn.startswith("ds_swizzle") or mn.startswith("ds_bpermute"):
            I.wr = regs_of(ops[0])
            for o in ops[1:]:
                I.rd |= regs_of(o)
        else:
            for o in ops:
                I.rd |= regs_of(o)
    elif mn.startswith("buffer_") or mn.startswith("global_"):
        I.kind = "vmem"
        allmods = mods + " " + rest
        is_lds = re.search(r"\blds\b", allmods) is not None
        if mn in ("buffer_inv", "buffer_wbl2"):
            pass
        elif "load" in mn:
            if is_lds:
                I.lds_dma = True
                for o in ops:
                    I.rd |= regs_of(o)
                I.rd |= {("s", "m0")}
            else:
                I.wr = regs_of(ops[0])
                for o in ops[1:]:
                    I.rd |= regs_of(o)
        else:
            for o in ops:
                I.rd |= regs_of(o)
            data = regs_of(ops[0]) if mn.startswith("buffer_") else regs_of(ops[1])
            if "sc0" in allmods.split() and "atomic" in mn:
                I.wr = data
            if mn.endswith("x4") or mn.endswith("x3"):
                I.wide_store = True
                I.sdata = data
    elif mn.startswith("s_"):
        I.kind = "salu"
        if mn.startswith("s_cmp") or mn in ("s_waitcnt", "s_barrier", "s_branch", "s_endpgm", "s_sleep", "s_setprio") or mn.startswith("s_cbranch"):
            for o in ops:
                I.rd |= regs_of(o)
        else:
            if ops:
                I.wr = regs_of(ops[0])
            for o in ops[1:]:
                I.rd |= regs_of(o)
            if "saveexec" in mn:
                I.wr |= {("s", "exec")}
    else:
        I.kind = "other"
    return I


def need(prev, cur):
    n = 0
    pv_w = {r for r in prev.wr if r[0] == "v"}
    ps_w = {r for r in prev.wr if r[0] == "s"}
    is_valu_prev = prev.kind in ("valu", "permlane", "readlane")
    is_valu_cur = cur.kind in ("valu", "permlane", "readlane")
    if prev.kind == "mfma":
        D = prev.wr
        big = prev.passes == 8
        if cur.kind == "mfma":
            if cur.srcab & D:
                n = max(n, 12 if big else 8)
            if cur.srcc & D:
                if cur.srcc == D and cur.passes == prev.passes:
                    pass
                else:
                    n = max(n, 10 if big else 6)
            elif cur.wr & D:
                n = max(n, 10 if big else 6)
        else:
            if (cur.rd & D) or (cur.wr & D):
                n = max(n, 12 if big else 8)
        if is_valu_cur and (cur.wr & prev.srcc):
            n = max(n, 7 if big else 3)
    if is_valu_prev:
        if cur.kind == "mfma" and (cur.rd & pv_w):
            n = max(n, 2)
        if cur.kind == "permlane" and (cur.rd & pv_w):
            n = max(n, 2)
        if cur.kind == "readlane" and (cur.rd & pv_w):
            n = max(n, 1)
        if cur.dpp and (cur.rd & pv_w):
            n = max(n, 2)
        if prev.trans and (is_valu_cur or cur.kind == "mfma") and not cur.trans and (cur.rd & pv_w):
            n = max(n, 1)
        if prev.dot and ((cur.rd | cur.wr) & pv_w) and not (cur.dot and cur.mn == prev.mn):
            n = max(n, 3)
        if ps_w:
            if is_valu_cur and (cur.rd & ps_w):
                n = max(n, 4 if cur.kind == "readlane" else 2)
            if cur.kind == "vmem" and (cur.rd & ps_w):
                n = max(n, 5)
            if cur.kind == "salu" and (cur.rd & ps_w):
                n = max(n, 1)
    if prev.wide_store and (cur.wr & prev.sdata):
        n = max(n, 2)
    if prev.kind == "salu" and ("s", "m0") in prev.wr and cur.lds_dma:
        n = max(n, 1)
    return n


class G:
    def __init__(self):
        self.L = []

    def __call__(self, txt):
        for ln in txt.split("\n"):
            ln = ln.strip()
            if ln:
                self.L.append(ln)

    def text(self, auto_nop=True):
        out = []
        hist = []
        pos = 0
        WIN = 24
        total_added = 0
        for ln in self.L:
            if ln.endswith(":") or ln.startswith(".") or ln.startswith(";"):
                out.append(ln)
                continue
            I = classify(ln)
            if auto_nop:
                req = 0
                for (P, ppos) in hist:
                    dist = pos - ppos - 1
                    nd = need(P, I)
                    if nd > dist:
                        req = max(req, nd - dist)
                if req:
                    total_added += req
                    r = req
                    while r > 0:
                        k = min(r, 16)
                        out.append(f"  s_nop {k-1}")
                        r -= k
                    pos += req
            out.append("  " + ln)
            hist.append((I, pos + I.nops - 1))
            pos += I.nops
            hist = [(P, pp) for (P, pp) in hist if pos - pp <= WIN]
        self.added = total_added
        return "\n".join(out) + "\n"
```

```python
import sys
from asmlib import G, v, s

NAME = "gated_mix__linear_attn_block__sliding_local_dilated__prompt"
KNAME = NAME + "_kernel"

WS_PQ = 0
WS_OB = 0x200000
WS_KV = 0x400000
WS_G = 0x410000
WS_SIZE = 0x420000
WS_TS = 0x500000

LOG2E = 0x3fb8aa3b
EPS = 0x358637bd
NEGBIG = 0xf149f2ca
QSCALE = 0x3eb8aa3b

XB = 18432
SLOT = 43008
WOA = 32768
WOB = 98304
KVB = 0
LDS_BYTES = 163840

S_X, S_W, S_WS, S_GT, S_WOA, S_WOB, S_OUT = 16, 20, 24, 28, 52, 56, 60
sX, sWA, sWOA, sGT, sWB, sWOB, sOUT, sDBG, sWS = 4, 6, 8, 10, 12, 14, 44, 46, 48
sRB, sTY, sHG, sROT, sWV, sLW, sP, sNB = 32, 33, 34, 35, 36, 37, 38, 39
sL = 50
T0 = 80

OPT = dict(stamp=False, clk="s_memrealtime", rot=True)


def srd(g, d, lo, size):
    g(f"s_mov_b32 s{d}, s{lo}\ns_mov_b32 s{d+1}, s{lo+1}\ns_mov_b32 s{d+2}, {size:#x}\ns_mov_b32 s{d+3}, 0x20000")


def sreg(idx):
    return 64 + 2 * idx if idx < 8 else 96 + 2 * (idx - 8)


def stamp(g, idx):
    if OPT["stamp"]:
        g(f"{OPT['clk']} s[{sreg(idx)}:{sreg(idx)+1}]")


def stamp_flush(g, region, n, wave_val, label):
    if not OPT["stamp"]:
        return
    g(f"s_cmp_lg_u32 s{sWV}, {wave_val}\ns_cbranch_scc1 {label}")
    g("s_waitcnt vmcnt(0)")
    g(f"{OPT['clk']} s[{sreg(n-1)}:{sreg(n-1)+1}]\ns_waitcnt lgkmcnt(0)")
    g(f"s_lshl_b32 s90, s2, 6\ns_add_u32 s90, s90, {WS_TS + region*0x4000:#x}\ns_add_u32 s92, s{sWS}, s90\ns_addc_u32 s93, s{sWS+1}, 0")
    g("v_mov_b32 v250, 0\ns_mov_b64 exec, 1")
    for i in range(n):
        g(f"v_mov_b32 v251, s{sreg(i)}\nglobal_store_dword v250, v251, s[92:93] offset:{4*i}")
    g("s_mov_b64 exec, -1")
    g(f"{label}:")


class VM:
    def __init__(self, g):
        self.g = g
        self.ops = []

    def issue(self, tag, text):
        self.g(text)
        self.ops.append(tag)

    def wait(self, tag):
        last = max(i for i, t in enumerate(self.ops) if t == tag)
        n = len(self.ops) - 1 - last
        assert n <= 63, n
        self.g(f"s_waitcnt vmcnt({n})")


def loader(g):
    lw = sLW
    g("LOADER:")
    g(f"s_sub_u32 s{lw}, s{sWV}, 4")
    g("v_lshrrev_b32 v1, 3, v0\nv_and_b32 v2, 7, v0")
    g(f"s_lshl_b32 s80, s{lw}, 3\nv_add_u32 v3, s80, v1")
    g("v_and_b32 v4, 2, v1\nv_lshlrev_b32 v4, 1, v4")
    g("v_xor_b32 v9, v4, v2\nv_lshlrev_b32 v9, 4, v9")
    g(f"s_and_b32 s80, s{lw}, 1\ns_lshl_b32 s80, s80, 1\nv_or_b32 v4, s80, v4\nv_xor_b32 v4, v4, v2\nv_lshlrev_b32 v4, 4, v4")
    g(f"v_mul_u32_u24 v5, 3072, v3\nv_add_u32 v5, v5, v4\ns_lshl_b32 s80, s{sHG}, 7\nv_add_u32 v15, s80, v5")
    g(f"v_add_u32 v16, {32*3072}, v15")
    g("v_lshrrev_b32 v4, 4, v3\nv_and_b32 v5, 15, v3\nv_lshlrev_b32 v5, 1, v5\nv_add_u32 v5, v5, v4")
    g("v_lshrrev_b32 v6, 1, v3\nv_and_b32 v6, 7, v6\nv_xor_b32 v6, v6, v2\nv_lshlrev_b32 v6, 4, v6")
    g(f"s_lshl_b32 s81, s{sRB}, 7\nv_add_u32 v5, s81, v5\nv_lshlrev_b32 v5, 10, v5\nv_add_u32 v10, v5, v6")
    for j in range(1, 4):
        g(f"v_add_u32 v{10+j}, {j*32768}, v10")
    g(f"s_lshl_b32 s80, s{lw}, 2\nv_add_u32 v4, s80, v1")
    g("v_and_b32 v5, 7, v4\nv_lshlrev_b32 v5, 1, v5\nv_lshrrev_b32 v6, 3, v4\nv_add_u32 v5, v5, v6")
    g("s_sub_i32 s82, s81, 16\nv_add_u32 v5, s82, v5\nv_max_i32 v5, 0, v5\nv_lshlrev_b32 v5, 10, v5")
    g("v_lshrrev_b32 v6, 1, v4\nv_and_b32 v6, 7, v6\nv_xor_b32 v6, v6, v2\nv_lshlrev_b32 v6, 4, v6\nv_add_u32 v14, v5, v6")
    g(f"v_lshlrev_b32 v17, 10, v3\nv_add_u32 v17, v17, v9\ns_lshl_b32 s80, s{sNB}, 7\nv_add_u32 v17, s80, v17")
    g(f"s_lshl_b32 s83, s{lw}, 10")
    g(f"s_lshl_b32 s84, s{lw}, 9")
    g("s_waitcnt lgkmcnt(0)")
    srd(g, S_X, sX, 0x200000)
    g(f"s_cmp_eq_u32 s{sTY}, 0\ns_cselect_b32 s{S_W}, s{sWA}, s{sWB}\ns_cselect_b32 s{S_W+1}, s{sWA+1}, s{sWB+1}\ns_mov_b32 s{S_W+2}, 0x180000\ns_mov_b32 s{S_W+3}, 0x20000")
    srd(g, S_WOA, sWOA, 0x80000)
    srd(g, S_WOB, sWOB, 0x80000)
    vm = VM(g)

    def issue_stage(st):
        slot = (st % 3) * SLOT
        g(f"s_add_u32 s85, s{sROT}, {st}\ns_and_b32 s85, s85, 7\ns_lshl_b32 s86, s85, 7\ns_mul_i32 s87, s85, {64*3072}")
        for j in range(6):
            t = j >> 1
            g(f"s_add_u32 m0, s83, {slot + XB + t*8192 + 4*(j&1)*1024 - t*1024}")
            off = f" offset:{t*1024}" if t else ""
            vm.issue(("S", st), f"buffer_load_dwordx4 v{15+(j&1)}, s[{S_W}:{S_W+3}], s87 offen{off} lds")
        for j in range(4):
            g(f"s_add_u32 m0, s83, {slot + j*4096}")
            vm.issue(("S", st), f"buffer_load_dwordx4 v{10+j}, s[{S_X}:{S_X+3}], s86 offen lds")
        g(f"s_add_u32 m0, s84, {slot + 16384}\ns_mov_b32 exec_hi, 0")
        vm.issue(("S", st), f"buffer_load_dwordx4 v14, s[{S_X}:{S_X+3}], s86 offen lds")
        g("s_mov_b64 exec, -1")

    def issue_wo(br, m0blk, nm, tag):
        base = WOB if br else WOA
        sr = S_WOB if br else S_WOA
        for m in range(m0blk, m0blk + nm):
            g(f"s_mov_b32 s85, {m*32768}\ns_add_u32 m0, s83, {base + m*4096}")
            vm.issue(tag, f"buffer_load_dwordx4 v17, s[{sr}:{sr+3}], s85 offen lds")

    issue_stage(0)
    issue_stage(1)
    stamp(g, 1)
    vm.wait(("S", 0))
    stamp(g, 2)
    g("s_barrier")
    issue_stage(2)
    for st in range(1, 8):
        vm.wait(("S", st))
        g("s_barrier")
        if st + 2 < 8:
            issue_stage(st + 2)
        if 1 <= st <= 4:
            issue_wo(1, 8 + 2 * (st - 1), 2, "W")
        if st == 6:
            issue_wo(1, 0, 8, "W")
            issue_wo(0, 13, 3, "W")
        if st == 7:
            issue_wo(0, 0, 2, "W")
    stamp(g, 3)
    g("s_barrier")
    issue_wo(0, 2, 11, "W")
    g("s_waitcnt vmcnt(0)")
    stamp(g, 4)
    srd(g, S_WS, sWS, WS_SIZE)
    srd(g, S_OUT, sOUT, 0x200000)
    g("s_branch JOIN9")


def comp_prologue(g):
    srd(g, S_X, sX, 0x200000)
    srd(g, S_WS, sWS, WS_SIZE)
    srd(g, S_GT, sGT, 1024)
    srd(g, S_OUT, sOUT, 0x200000)
    g(f"s_or_b32 s80, s{sTY}, s{sRB}\ns_cmp_lg_u32 s80, 0\ns_cbranch_scc1 NOZERO")
    g(f"s_lshl_b32 s80, s{sHG}, 2\ns_add_u32 s80, s80, s{sWV}")
    g(f"s_lshl_b32 s81, s80, 10\ns_add_u32 s81, s81, {WS_KV:#x}\nv_lshlrev_b32 v1, 4, v0\nv_add_u32 v1, s81, v1")
    g("v_mov_b32 v4, 0\nv_mov_b32 v5, 0\nv_mov_b32 v6, 0\nv_mov_b32 v7, 0")
    g(f"buffer_store_dwordx4 v[4:7], v1, s[{S_WS}:{S_WS+3}], 0 offen sc1")
    g(f"s_lshl_b32 s81, s80, 6\ns_add_u32 s81, s81, {WS_KV+0x8000:#x}\nv_lshlrev_b32 v1, 2, v0\nv_add_u32 v1, s81, v1")
    g("v_cmp_gt_u32 vcc, 16, v0\ns_and_saveexec_b64 s[82:83], vcc")
    g(f"buffer_store_dword v4, v1, s[{S_WS}:{S_WS+3}], 0 offen sc1\ns_mov_b64 exec, s[82:83]")
    g("NOZERO:")
    g(f"s_lshl_b32 s80, s{sTY}, 3\ns_add_u32 s80, s80, s{sHG}\ns_lshl_b32 s80, s80, 3")
    g(f"s_lshl_b32 s81, s{sRB}, 7\ns_add_u32 s80, s80, s81\ns_lshl_b32 s81, s{sWV}, 1\ns_add_u32 s80, s80, s81")
    g("v_lshrrev_b32 v1, 5, v0\nv_add_u32 v1, s80, v1")
    g("v_and_b32 v2, 31, v0\nv_lshlrev_b32 v2, 5, v2")
    g("v_lshlrev_b32 v3, 10, v1\nv_add_u32 v3, v3, v2")
    g(f"buffer_load_dwordx4 v[4:7], v3, s[{S_X}:{S_X+3}], 0 offen")
    g(f"buffer_load_dwordx4 v[8:11], v3, s[{S_X}:{S_X+3}], 0 offen offset:16")
    g(f"buffer_load_dwordx4 v[12:15], v2, s[{S_GT}:{S_GT+3}], 0 offen")
    g(f"buffer_load_dwordx4 v[16:19], v2, s[{S_GT}:{S_GT+3}], 0 offen offset:16")
    g("v_mov_b32 v20, 0\ns_waitcnt vmcnt(0)")
    for i in range(8):
        g(f"v_dot2_f32_bf16 v20, v{4+i}, v{12+i}, v20")
    for off in (0x041F, 0x081F, 0x101F, 0x201F, 0x401F):
        g(f"ds_swizzle_b32 v21, v20 offset:{off:#x}\ns_waitcnt lgkmcnt(0)\nv_add_f32 v20, v20, v21")
    g(f"v_mul_f32 v20, 0xbfb8aa3b, v20\nv_exp_f32 v20, v20\nv_add_f32 v20, 1.0, v20\nv_rcp_f32 v20, v20")
    g(f"v_lshlrev_b32 v1, 2, v1\nv_add_u32 v1, {WS_G:#x}, v1")
    g("v_and_b32 v2, 31, v0\nv_cmp_eq_u32 vcc, 0, v2\ns_and_saveexec_b64 s[80:81], vcc")
    g(f"buffer_store_dword v20, v1, s[{S_WS}:{S_WS+3}], 0 offen sc1\ns_mov_b64 exec, s[80:81]")


def set_flag(g, val, tmp=2):
    g(f"v_mov_b32 v{tmp}, s{sL}\nv_mov_b32 v{tmp+1}, {val}\ns_mov_b64 exec, 1")
    g(f"global_store_byte v{tmp}, v{tmp+1}, s[{sDBG}:{sDBG+1}] sc0 sc1\ns_mov_b64 exec, -1")


ACC = 128
F = [24, 72]
XA0, XA1, WA_ = 4, 5, 6
CX0, CX1, CW = 8, 9, 10


def comp_mainloop(g, typ):
    nt = 9 if typ else 8
    Q, K = ACC, ACC + 32
    V = K + 4 * nt
    lab = "B" if typ else "A"
    g("v_and_b32 v11, 15, v0\nv_lshrrev_b32 v12, 4, v0")
    g("v_lshrrev_b32 v13, 1, v11\nv_and_b32 v13, 7, v13")
    g("v_xor_b32 v14, v12, v13\nv_lshlrev_b32 v14, 4, v14\nv_lshlrev_b32 v15, 7, v11")
    g(f"v_add_u32 v{XA0}, v14, v15\nv_xor_b32 v{XA1}, 64, v{XA0}")
    g("v_lshrrev_b32 v13, 2, v0\nv_and_b32 v13, 3, v13\nv_and_b32 v14, 3, v0")
    g("v_lshlrev_b32 v15, 3, v12\nv_add_u32 v15, v15, v13\nv_lshlrev_b32 v15, 7, v15")
    g("v_and_b32 v16, 2, v13\nv_lshlrev_b32 v16, 1, v16\nv_and_b32 v17, 1, v12\nv_lshlrev_b32 v17, 1, v17\nv_or_b32 v16, v16, v17")
    g(f"v_lshrrev_b32 v17, 1, v14\ns_lshl_b32 s80, s{sWV}, 1\nv_add_u32 v17, s80, v17\nv_xor_b32 v17, v17, v16\nv_lshlrev_b32 v17, 4, v17")
    g(f"v_and_b32 v18, 1, v14\nv_lshlrev_b32 v18, 3, v18\nv_add_u32 v15, v15, v17\nv_add_u32 v15, v15, v18\nv_add_u32 v{WA_}, {XB}, v15")
    for i in range(32 + 8 * nt):
        g(f"v_mov_b32 v{ACC+i}, 0")

    def reads(fs, kk):
        cx = CX1 if kk else CX0
        r = []
        for t in range(3):
            for h in range(2):
                r.append(f"ds_read_b64_tr_b16 {v(F[fs]+36+4*t+2*h,2)}, v{CW} offset:{t*8192+kk*4096+h*512}")
        for T in range(nt):
            r.append(f"ds_read_b128 {v(F[fs]+4*T,4)}, v{cx} offset:{T*2048}")
        return r

    def mfmas(fs):
        m = []
        x = lambda T: v(F[fs] + 4 * T, 4)
        w = lambda t: v(F[fs] + 36 + 4 * t, 4)
        for T in range(nt):
            if T < 8:
                m.append(f"v_mfma_f32_16x16x32_bf16 {v(Q+4*T,4)}, {w(0)}, {x(T)}, {v(Q+4*T,4)}")
            if typ:
                m.append(f"v_mfma_f32_16x16x32_bf16 {v(K+4*T,4)}, {w(1)}, {x(T)}, {v(K+4*T,4)}")
            else:
                m.append(f"v_mfma_f32_16x16x32_bf16 {v(K+4*T,4)}, {x(T)}, {w(1)}, {v(K+4*T,4)}")
            m.append(f"v_mfma_f32_16x16x32_bf16 {v(V+4*T,4)}, {x(T)}, {w(2)}, {v(V+4*T,4)}")
        return m

    def inter(mf, rd):
        rd = list(rd)
        for m in mf:
            g(m)
            if rd:
                g(rd.pop(0))
        for r in rd:
            g(r)

    def setaddr():
        g(f"v_add_u32 v{CX0}, s80, v{XA0}\nv_add_u32 v{CX1}, s80, v{XA1}\nv_add_u32 v{CW}, s80, v{WA_}")

    g("s_mov_b32 s80, 0\ns_mov_b32 s81, 0")
    stamp(g, 1)
    g("s_barrier")
    stamp(g, 2)
    setaddr()
    for r in reads(0, 0):
        g(r)
    g(f"LOOP{lab}:")
    g("s_waitcnt lgkmcnt(0)")
    inter(mfmas(0), reads(1, 1))
    g(f"s_add_u32 s80, s80, {SLOT}\ns_cmp_eq_u32 s80, {3*SLOT}\ns_cselect_b32 s80, 0, s80")
    setaddr()
    g("s_waitcnt lgkmcnt(0)")
    g("s_barrier")
    inter(mfmas(1), reads(0, 0))
    g(f"s_add_u32 s81, s81, 1\ns_cmp_lt_u32 s81, 8\ns_cbranch_scc1 LOOP{lab}")
    g("s_waitcnt lgkmcnt(0)\ns_nop 7")
    stamp(g, 3)
    return Q, K, V


def store_pairs_addr(g, base, vreg):
    g(f"s_lshl_b32 s82, s{sRB}, 17\ns_lshl_b32 s83, s{sHG}, 12\ns_add_u32 s82, s82, s83\ns_lshl_b32 s83, s{sWV}, 10\ns_add_u32 s82, s82, s83")
    if base:
        g(f"s_add_u32 s82, s82, {base:#x}")
    g(f"v_lshlrev_b32 v{vreg}, 4, v0\nv_add_u32 v{vreg}, s82, v{vreg}")


def epi_B(g, Q, K, V):
    QB, KB = 24, 40
    VB = [60, 70]
    for T in range(8):
        g(f"v_cvt_pk_bf16_f32 v{QB+2*T}, v{Q+4*T}, v{Q+4*T+1}\nv_cvt_pk_bf16_f32 v{QB+2*T+1}, v{Q+4*T+2}, v{Q+4*T+3}")
    for T in range(9):
        g(f"v_cvt_pk_bf16_f32 v{KB+2*T}, v{K+4*T}, v{K+4*T+1}\nv_cvt_pk_bf16_f32 v{KB+2*T+1}, v{K+4*T+2}, v{K+4*T+3}")
    for T in range(9):
        dsts = [VB[0], VB[1]] if T == 8 else [VB[T & 1] + 2 + 2 * (T >> 1)]
        for d in dsts:
            g(f"v_cvt_pk_bf16_f32 v{d}, v{V+4*T}, v{V+4*T+1}\nv_cvt_pk_bf16_f32 v{d+1}, v{V+4*T+2}, v{V+4*T+3}")
    BC, BPS, BP0, BP1 = 80, 84, 88, 92
    M, MN, ONES = 96, 98, 100
    g("v_lshlrev_b32 v13, 2, v12")
    g(f"v_mov_b32 v14, {NEGBIG:#x}\nv_mov_b32 v15, 0")
    g(f"v_mov_b32 v{M}, 0\nv_mov_b32 v{M+1}, 0")
    g(f"s_cmp_eq_u32 s{sRB}, 0\ns_cselect_b64 s[90:91], 0, -1")
    for r in range(4):
        g(f"v_add_u32 v16, {r}, v13")
        g("v_cmp_le_u32 s[82:83], v16, v11")
        g("v_add_u32 v17, 7, v16\nv_cmp_ge_u32 s[84:85], v17, v11")
        g("v_add_u32 v17, 9, v11\nv_cmp_ge_u32 s[86:87], v16, v17")
        g("v_cmp_ge_u32 s[88:89], 7, v16")
        g("s_and_b64 s[84:85], s[84:85], s[82:83]\ns_andn2_b64 s[88:89], s[88:89], s[82:83]")
        g(f"v_cndmask_b32 v{BC+r}, v14, v15, s[84:85]")
        g(f"v_cndmask_b32 v{BPS+r}, v14, v15, s[86:87]")
        g("s_and_b64 s[86:87], s[86:87], s[90:91]\ns_and_b64 s[88:89], s[88:89], s[90:91]")
        g(f"v_cndmask_b32 v{BP0+r}, v14, v15, s[88:89]")
        g(f"v_cndmask_b32 v{BP1+r}, v14, v15, s[86:87]")
        mk = 0xffff if (r & 1) == 0 else 0xffff0000
        g(f"v_mov_b32 v17, {mk:#x}\nv_cndmask_b32 v17, v15, v17, s[82:83]\nv_or_b32 v{M+(r>>1)}, v{M+(r>>1)}, v17")
    g(f"v_not_b32 v{MN}, v{M}\nv_not_b32 v{MN+1}, v{M+1}")
    for i in range(4):
        g(f"v_mov_b32 v{ONES+i}, 0x3f803f80")
    g(f"s_mov_b32 s84, {QSCALE:#x}\ns_mov_b32 s85, {QSCALE | 0x80000000:#x}")
    store_pairs_addr(g, WS_OB, 19)
    TB = 128
    SC = lambda t: TB + 24 * t
    SP = lambda t: TB + 24 * t + 4
    BOP = lambda t: TB + 24 * t + 8
    OO = lambda t: TB + 24 * t + 12
    SUM = lambda t: TB + 24 * t + 16
    MX = lambda t: TB + 24 * t + 20
    RES = 104
    for grp in range(2):
        tiles = [(2 * grp, 0), (2 * grp, 1), (2 * grp + 1, 0), (2 * grp + 1, 1)]
        for t, (b, p) in enumerate(tiles):
            T = 2 * b + p
            prev = 8 if b == 0 else T - 2
            bp = (BP0 if p == 0 else BP1) if b == 0 else BPS
            g(f"v_mfma_f32_16x16x16_bf16 {v(SC(t),4)}, {v(KB+2*T,2)}, {v(QB+2*T,2)}, {v(BC,4)}")
            g(f"v_mfma_f32_16x16x16_bf16 {v(SP(t),4)}, {v(KB+2*prev,2)}, {v(QB+2*T,2)}, {v(bp,4)}")
        for t in range(4):
            for r in range(4):
                g(f"v_max_f32 v{SC(t)+r}, v{SC(t)+r}, v{SP(t)+r}")
        for t in range(4):
            g(f"v_max3_f32 v{MX(t)}, v{SC(t)}, v{SC(t)+1}, v{SC(t)+2}")
        for t in range(4):
            g(f"v_max_f32 v{MX(t)}, v{MX(t)}, v{SC(t)+3}")
        m = [MX(t) for t in range(4)]
        g(f"v_permlane32_swap_b32 v{m[0]}, v{m[1]}\nv_permlane32_swap_b32 v{m[2]}, v{m[3]}")
        g(f"v_max_f32 v{m[0]}, v{m[0]}, v{m[1]}\nv_max_f32 v{m[2]}, v{m[2]}, v{m[3]}")
        g(f"v_permlane16_swap_b32 v{m[0]}, v{m[2]}")
        g(f"v_max_f32 v{m[0]}, v{m[0]}, v{m[2]}")
        g(f"v_mul_f32 v{m[0]}, s85, v{m[0]}")
        g(f"v_mov_b32 v{m[2]}, v{m[0]}")
        g(f"v_permlane16_swap_b32 v{m[0]}, v{m[2]}")
        g(f"v_mov_b32 v{m[1]}, v{m[0]}\nv_mov_b32 v{m[3]}, v{m[2]}")
        g(f"v_permlane32_swap_b32 v{m[0]}, v{m[1]}\nv_permlane32_swap_b32 v{m[2]}, v{m[3]}")
        for t in range(4):
            for r in range(4):
                g(f"v_fma_f32 v{SC(t)+r}, v{SC(t)+r}, s84, v{m[t]}")
        for t in range(4):
            for r in range(4):
                g(f"v_exp_f32 v{SC(t)+r}, v{SC(t)+r}")
        for t in range(4):
            g(f"v_cvt_pk_bf16_f32 v{SP(t)}, v{SC(t)}, v{SC(t)+1}\nv_cvt_pk_bf16_f32 v{SP(t)+1}, v{SC(t)+2}, v{SC(t)+3}")
        for t in range(4):
            g(f"v_and_b32 v{BOP(t)}, v{SP(t)}, v{MN}\nv_and_b32 v{BOP(t)+1}, v{SP(t)+1}, v{MN+1}")
            g(f"v_and_b32 v{BOP(t)+2}, v{SP(t)}, v{M}\nv_and_b32 v{BOP(t)+3}, v{SP(t)+1}, v{M+1}")
        for t, (b, p) in enumerate(tiles):
            g(f"v_mfma_f32_16x16x32_bf16 {v(SUM(t),4)}, {v(ONES,4)}, {v(BOP(t),4)}, 0")
            g(f"v_mfma_f32_16x16x32_bf16 {v(OO(t),4)}, {v(VB[p]+2*b,4)}, {v(BOP(t),4)}, 0")
        for t in range(4):
            g(f"v_rcp_f32 v{SUM(t)}, v{SUM(t)}")
        for t in range(4):
            for r in range(4):
                g(f"v_mul_f32 v{OO(t)+r}, v{OO(t)+r}, v{SUM(t)}")
        for t, (b, p) in enumerate(tiles):
            R = RES + 4 * (t >> 1) + 2 * p
            g(f"v_cvt_pk_bf16_f32 v{R}, v{OO(t)}, v{OO(t)+1}\nv_cvt_pk_bf16_f32 v{R+1}, v{OO(t)+2}, v{OO(t)+3}")
        for bb in range(2):
            R = RES + 4 * bb
            g(f"v_permlane16_swap_b32 v{R}, v{R+2}\nv_permlane16_swap_b32 v{R+1}, v{R+3}")
        for bb in range(2):
            R = RES + 4 * bb
            b = 2 * grp + bb
            g(f"s_mov_b32 s86, {b*32768}")
            g(f"buffer_store_dwordx4 {v(R,4)}, v19, s[{S_WS}:{S_WS+3}], s86 offen sc1")


def phi_list(g, regs, t1base):
    for i, r in enumerate(regs):
        g(f"v_mul_f32 v{t1base+i}, {LOG2E:#x}, v{r}")
    for i, r in enumerate(regs):
        g(f"v_exp_f32 v{t1base+i}, v{t1base+i} clamp")
    for i, r in enumerate(regs):
        g(f"v_max_f32 v{r}, 0, v{r}")
    for i, r in enumerate(regs):
        g(f"v_add_f32 v{r}, v{r}, v{t1base+i}")
    for i, r in enumerate(regs):
        g(f"v_add_f32 v{r}, {EPS:#x}, v{r}")


def epi_A(g, Q, K, V):
    g(f"v_mov_b32 v22, s{sHG}\nglobal_load_ubyte v23, v22, s[{sDBG}:{sDBG+1}] sc0 sc1")
    KB, VBf, ONES = 24, 40, 56
    for i in range(4):
        g(f"v_mov_b32 v{ONES+i}, 0x3f803f80")
    for half in range(2):
        phi_list(g, [K + 16 * half + i for i in range(16)], 64)
    for T in range(8):
        g(f"v_cvt_pk_bf16_f32 v{KB+2*T}, v{K+4*T}, v{K+4*T+1}\nv_cvt_pk_bf16_f32 v{KB+2*T+1}, v{K+4*T+2}, v{K+4*T+3}")
        g(f"v_cvt_pk_bf16_f32 v{VBf+2*T}, v{V+4*T}, v{V+4*T+1}\nv_cvt_pk_bf16_f32 v{VBf+2*T+1}, v{V+4*T+2}, v{V+4*T+3}")
    KVA, ZA = 80, 84
    for i in range(4):
        c1 = "0" if i == 0 else v(KVA, 4)
        c2 = "0" if i == 0 else v(ZA, 4)
        g(f"v_mfma_f32_16x16x32_bf16 {v(KVA,4)}, {v(KB+4*i,4)}, {v(VBf+4*i,4)}, {c1}")
        g(f"v_mfma_f32_16x16x32_bf16 {v(ZA,4)}, {v(KB+4*i,4)}, {v(ONES,4)}, {c2}")
    g("v_lshrrev_b32 v13, 1, v12\nv_and_b32 v14, 1, v12")
    g(f"s_lshl_b32 s82, s{sWV}, 11")
    g("v_lshlrev_b32 v15, 9, v13\nv_lshlrev_b32 v16, 5, v11\nv_add_u32 v15, v15, v16\nv_lshlrev_b32 v16, 4, v14\nv_add_u32 v15, v15, v16\nv_add_u32 v15, s82, v15")
    g("v_lshlrev_b32 v17, 5, v13\nv_add_u32 v17, v17, v16\nv_add_u32 v17, s82, v17")
    g(f"ds_write_b128 v15, {v(KVA,4)}")
    g("v_cmp_eq_u32 vcc, 0, v11\ns_and_saveexec_b64 s[84:85], vcc")
    g(f"ds_write_b128 v17, {v(ZA,4)} offset:1024\ns_mov_b64 exec, s[84:85]")
    g("v_lshlrev_b32 v18, 2, v0\nv_add_u32 v20, s82, v18\ns_waitcnt lgkmcnt(0)")
    for m in range(4):
        g(f"ds_read_b32 v{88+m}, v20 offset:{m*256}")
    g("ds_read_b32 v92, v20 offset:1024")
    g(f"s_lshl_b32 s83, s{sHG}, 2\ns_add_u32 s83, s83, s{sWV}")
    g(f"s_lshl_b32 s84, s83, 10\ns_add_u32 s84, s84, {WS_KV:#x}\nv_add_u32 v21, s84, v18")
    g(f"s_lshl_b32 s84, s83, 6\ns_add_u32 s84, s84, {WS_KV+0x8000:#x}\nv_add_u32 v18, s84, v18")
    g("s_mov_b32 s86, 0")
    g("AINIT:\ns_waitcnt vmcnt(0)\nv_readfirstlane_b32 s85, v23\ns_cmp_ge_u32 s85, 1\ns_cbranch_scc1 AINIT_OK")
    g(f"s_sleep 2\nglobal_load_ubyte v23, v22, s[{sDBG}:{sDBG+1}] sc0 sc1\ns_add_u32 s86, s86, 1\ns_cmp_lt_u32 s86, 0x40000\ns_cbranch_scc1 AINIT")
    g("AINIT_OK:\ns_waitcnt lgkmcnt(0)")
    for m in range(4):
        g(f"buffer_atomic_add_f32 v{88+m}, v21, s[{S_WS}:{S_WS+3}], 0 offen offset:{m*256}")
    g("v_cmp_gt_u32 vcc, 16, v0\ns_and_saveexec_b64 s[84:85], vcc")
    g(f"buffer_atomic_add_f32 v92, v18, s[{S_WS}:{S_WS+3}], 0 offen\ns_mov_b64 exec, s[84:85]")
    store_pairs_addr(g, WS_PQ, 19)
    for half in range(2):
        phi_list(g, [Q + 16 * half + i for i in range(16)], 64)
        for bb in range(2):
            b = 2 * half + bb
            R = 96 + 4 * bb
            for p in range(2):
                T = 2 * b + p
                g(f"v_cvt_pk_bf16_f32 v{R+2*p}, v{Q+4*T}, v{Q+4*T+1}\nv_cvt_pk_bf16_f32 v{R+2*p+1}, v{Q+4*T+2}, v{Q+4*T+3}")
        for bb in range(2):
            R = 96 + 4 * bb
            g(f"v_permlane16_swap_b32 v{R}, v{R+2}\nv_permlane16_swap_b32 v{R+1}, v{R+3}")
        for bb in range(2):
            R = 96 + 4 * bb
            b = 2 * half + bb
            g(f"s_mov_b32 s86, {b*32768}")
            g(f"buffer_store_dwordx4 {v(R,4)}, v19, s[{S_WS}:{S_WS+3}], s86 offen sc1")
        g("s_nop 1")


def phase2(g):
    g("JOIN9:")
    stamp(g, 5)
    g("s_barrier")
    g(f"s_cmp_lg_u32 s{sWV}, 4\ns_cbranch_scc1 NOPOLL")
    set_flag(g, 2)
    g("v_lshlrev_b32 v2, 2, v0\ns_mov_b32 s80, 0\ns_mov_b32 s81, 0x02020202")
    g(f"POLL:\nglobal_load_dword v3, v2, s[{sDBG}:{sDBG+1}] sc0 sc1\ns_waitcnt vmcnt(0)")
    g("v_cmp_ne_u32 vcc, s81, v3\ns_cbranch_vccz POLL_OK")
    g("s_sleep 1\ns_add_u32 s80, s80, 1\ns_cmp_lt_u32 s80, 0x40000\ns_cbranch_scc1 POLL")
    g("POLL_OK:")
    g("NOPOLL:")
    g("s_barrier")
    stamp(g, 6)
    sBR, sPH, sKH = 80, 81, 82
    g(f"s_lshr_b32 s{sBR}, s{sWV}, 2\ns_and_b32 s{sPH}, s{sWV}, 1\ns_lshr_b32 s{sKH}, s{sWV}, 1\ns_and_b32 s{sKH}, s{sKH}, 1")
    g(f"s_lshl_b32 s83, s{sWV}, 6\nv_add_u32 v2, s83, v0")
    g(f"v_lshlrev_b32 v7, 4, v2\nv_add_u32 v7, {WS_KV:#x}, v7")
    for m in range(4):
        g(f"s_mov_b32 s84, {m*8192}\nbuffer_load_dwordx4 {v(128+4*m,4)}, v7, s[{S_WS}:{S_WS+3}], s84 offen sc1")
    g("s_mov_b32 s84, 32768\nv_cmp_gt_u32 vcc, 128, v2\ns_and_saveexec_b64 s[86:87], vcc")
    g(f"buffer_load_dwordx4 v[144:147], v7, s[{S_WS}:{S_WS+3}], s84 offen sc1\ns_mov_b64 exec, s[86:87]")
    g("v_and_b32 v4, 15, v0\nv_lshlrev_b32 v4, 1, v4\nv_lshrrev_b32 v5, 4, v0\nv_and_b32 v5, 1, v5\nv_add_u32 v4, v4, v5")
    g(f"s_lshl_b32 s84, s{sP}, 6\ns_lshl_b32 s85, s{sPH}, 5\ns_add_u32 s84, s84, s85\nv_add_u32 v4, s84, v4")
    g(f"v_lshlrev_b32 v5, 2, v4\nv_add_u32 v5, {WS_G:#x}, v5\nbuffer_load_dword v6, v5, s[{S_WS}:{S_WS+3}], 0 offen sc1")
    ACT = 64
    g(f"s_lshl_b32 s84, s{sP}, 16\ns_lshl_b32 s85, s{sPH}, 15\ns_add_u32 s84, s84, s85\ns_lshl_b32 s85, s{sKH}, 14\ns_add_u32 s84, s84, s85")
    g(f"s_mul_i32 s85, s{sBR}, {WS_OB-WS_PQ:#x}\ns_add_u32 s84, s84, s85")
    g("v_lshlrev_b32 v3, 4, v0\nv_add_u32 v3, s84, v3")
    g(f"s_lshl_b32 s88, s{sNB}, 1")
    for i in range(16):
        g(f"s_add_u32 s85, s88, {i}\ns_and_b32 s85, s85, 15\ns_lshl_b32 s85, s85, 10")
        g(f"buffer_load_dwordx4 {v(ACT+4*i,4)}, v3, s[{S_WS}:{S_WS+3}], s85 offen sc1")
    g("s_waitcnt vmcnt(17)")
    g(f"v_lshlrev_b32 v9, 3, v2")
    if KVB:
        g(f"v_add_u32 v9, {KVB}, v9")
    for m in range(5):
        g(f"v_cvt_pk_bf16_f32 v{148+2*m}, v{128+4*m}, v{129+4*m}\nv_cvt_pk_bf16_f32 v{149+2*m}, v{130+4*m}, v{131+4*m}")
    for m in range(4):
        g(f"ds_write_b64 v9, {v(148+2*m,2)} offset:{m*4096}")
    g("v_cmp_gt_u32 vcc, 128, v2\ns_and_saveexec_b64 s[86:87], vcc")
    g(f"ds_write_b64 v9, v[156:157] offset:16384\ns_mov_b64 exec, s[86:87]")
    g("v_lshrrev_b32 v10, 5, v0\nv_lshrrev_b32 v11, 2, v0\nv_and_b32 v11, 3, v11\nv_and_b32 v12, 3, v0")
    g(f"s_cmp_eq_u32 s{sBR}, 0\ns_cselect_b32 s84, 2, 3")
    g("v_lshlrev_b32 v13, s84, v10\nv_add_u32 v13, v13, v11\nv_lshlrev_b32 v13, 7, v13")
    g("v_and_b32 v14, 1, v12\nv_lshlrev_b32 v14, 1, v14\nv_lshrrev_b32 v15, 4, v0\nv_and_b32 v15, 1, v15\nv_add_u32 v14, v14, v15")
    g("v_and_b32 v15, 2, v11\nv_lshlrev_b32 v15, 1, v15\nv_xor_b32 v14, v14, v15\nv_lshlrev_b32 v14, 4, v14")
    g("v_lshrrev_b32 v15, 1, v12\nv_lshlrev_b32 v15, 3, v15\nv_add_u32 v13, v13, v14\nv_add_u32 v13, v13, v15")
    g(f"s_cmp_eq_u32 s{sBR}, 0\ns_cselect_b32 s84, 0, {WOB-WOA}\ns_add_u32 s84, s84, {WOA}\ns_lshl_b32 s85, s{sKH}, 15\ns_add_u32 s84, s84, s85\nv_add_u32 v16, s84, v13\nv_xor_b32 v17, 64, v16")
    ACCR = 160
    for i in range(32):
        g(f"v_mov_b32 v{ACCR+i}, 0")
    g("s_waitcnt lgkmcnt(0)\ns_barrier")
    stamp(g, 7)
    WA0, WA1 = 18, 19
    WN0, WN1 = 20, 21
    g(f"s_cmp_eq_u32 s{sBR}, 0\ns_cbranch_scc0 P2B")

    def hoff(i, sreg, shift):
        g(f"s_add_u32 s{sreg}, s88, {i}\ns_and_b32 s{sreg}, s{sreg}, 15\ns_lshl_b32 s{sreg}, s{sreg}, {shift}")

    g("v_and_b32 v22, 31, v0\nv_lshlrev_b32 v23, 4, v22\nv_lshlrev_b32 v56, 8, v10\nv_add_u32 v23, v23, v56")
    g(f"s_lshl_b32 s84, s{sKH}, 13\ns_add_u32 s84, s84, {KVB}\nv_add_u32 v23, s84, v23")
    g(f"v_lshlrev_b32 v56, 4, v10\ns_lshl_b32 s84, s{sKH}, 9\ns_add_u32 s84, s84, {KVB+16384}\nv_add_u32 v56, s84, v56")
    g("v_cmp_gt_u32 vcc, 16, v22\nv_mov_b32 v57, 5\nv_mov_b32 v58, 9\nv_cndmask_b32 v23, v56, v23, vcc\nv_cndmask_b32 v57, v57, v58, vcc")
    D1 = [24, 40]
    BO = 60
    WF = [128, 136]
    AOP = [144, 148]
    KA = 59

    def a_reads(i):
        st = i & 1
        hoff(i, 84, 0)
        g(f"v_lshlrev_b32_e64 v{KA}, v57, s84\nv_add_u32 v{KA}, v{KA}, v23")
        g(f"ds_read_b128 {v(AOP[st],4)}, v{KA}")
        g(f"s_lshl_b32 s85, s84, 11\nv_add_u32 v{WA0}, s85, v16\nv_add_u32 v{WA1}, s85, v17")
        for ct, a in enumerate((WA0, WA1)):
            g(f"ds_read_b64_tr_b16 {v(WF[st]+4*ct,2)}, v{a}\nds_read_b64_tr_b16 {v(WF[st]+4*ct+2,2)}, v{a} offset:1024")

    a_reads(0)
    g("s_waitcnt lgkmcnt(4) vmcnt(15)")
    g(f"v_mfma_f32_32x32x16_bf16 {v(D1[0],16)}, {v(AOP[0],4)}, {v(ACT,4)}, 0")
    for i in range(16):
        st = i & 1
        if i + 1 < 16:
            a_reads(i + 1)
            g(f"s_waitcnt lgkmcnt(4) vmcnt({15-(i+1)})")
            g(f"v_mfma_f32_32x32x16_bf16 {v(D1[st^1],16)}, {v(AOP[st^1],4)}, {v(ACT+4*(i+1),4)}, 0")
        d = D1[st]
        g(f"v_add_f32 v{d+8}, {EPS:#x}, v{d+8}\nv_rcp_f32 v{d+8}, v{d+8}")
        for j in range(8):
            g(f"v_mul_f32 v{d+j}, v{d+j}, v{d+8}")
        for j in range(4):
            g(f"v_cvt_pk_bf16_f32 v{BO+j}, v{d+2*j}, v{d+2*j+1}")
        if i + 1 < 16:
            g("s_waitcnt lgkmcnt(5)")
        else:
            g("s_waitcnt lgkmcnt(0)")
        for ct in range(2):
            g(f"v_mfma_f32_32x32x16_bf16 {v(ACCR+16*ct,16)}, {v(WF[st]+4*ct,4)}, {v(BO,4)}, {v(ACCR+16*ct,16)}")
    for i in range(32):
        g(f"v_mul_f32 v{ACCR+i}, v{ACCR+i}, v6")
    g("s_branch P2RED")
    g("P2B:")

    def b_reads(i):
        st = i & 1
        hoff(i, 85, 11)
        g(f"v_add_u32 v{WA0}, s85, v16\nv_add_u32 v{WA1}, s85, v17")
        for ct, a in enumerate((WA0, WA1)):
            g(f"ds_read_b64_tr_b16 {v(WF[st]+4*ct,2)}, v{a}\nds_read_b64_tr_b16 {v(WF[st]+4*ct+2,2)}, v{a} offset:512")

    b_reads(0)
    for i in range(16):
        st = i & 1
        if i + 1 < 16:
            b_reads(i + 1)
            g(f"s_waitcnt lgkmcnt(4) vmcnt({15-i})")
        else:
            g("s_waitcnt lgkmcnt(0) vmcnt(0)")
        for ct in range(2):
            g(f"v_mfma_f32_32x32x16_bf16 {v(ACCR+16*ct,16)}, {v(WF[st]+4*ct,4)}, {v(ACT+4*i,4)}, {v(ACCR+16*ct,16)}")
    g("v_sub_f32 v6, 1.0, v6")
    for i in range(32):
        g(f"v_mul_f32 v{ACCR+i}, v{ACCR+i}, v6")
    g("P2RED:")
    stamp(g, 8)
    g("s_barrier")
    g(f"s_lshl_b32 s84, s{sWV}, 13\nv_lshlrev_b32 v18, 4, v0\nv_add_u32 v19, s84, v18\nv_add_u32 v19, {WOA}, v19")
    for q in range(8):
        g(f"ds_write_b128 v19, {v(ACCR+4*q,4)} offset:{q*1024}")
    g("s_waitcnt lgkmcnt(0)\ns_barrier")
    g(f"s_cmp_ge_u32 s{sWV}, 4\ns_cbranch_scc1 FIN")
    g(f"s_lshl_b32 s84, s{sPH}, 13\ns_lshl_b32 s85, s{sKH}, 12\ns_add_u32 s84, s84, s85\nv_add_u32 v19, s84, v18\nv_add_u32 v19, {WOA}, v19")
    for q in range(4):
        for src in range(4):
            g(f"ds_read_b128 {v(64+16*src+4*q,4)}, v19 offset:{src*16384+q*1024}")
    g("s_waitcnt lgkmcnt(0)")
    for i in range(16):
        g(f"v_add_f32 v{64+i}, v{64+i}, v{80+i}\nv_add_f32 v{96+i}, v{96+i}, v{112+i}")
    for i in range(16):
        g(f"v_add_f32 v{64+i}, v{64+i}, v{96+i}")
    for i in range(8):
        g(f"v_cvt_pk_bf16_f32 v{128+i}, v{64+2*i}, v{65+2*i}")
    g("v_lshlrev_b32 v20, 10, v4\nv_lshrrev_b32 v21, 5, v0\nv_lshlrev_b32 v21, 5, v21\nv_add_u32 v20, v20, v21")
    g(f"s_lshl_b32 s84, s{sNB}, 7\ns_lshl_b32 s85, s{sKH}, 6\ns_add_u32 s84, s84, s85\nv_add_u32 v20, s84, v20")
    g(f"buffer_store_dwordx4 v[128:131], v20, s[{S_OUT}:{S_OUT+3}], 0 offen\nbuffer_store_dwordx4 v[132:135], v20, s[{S_OUT}:{S_OUT+3}], 0 offen offset:16")
    g("FIN:")
    stamp_flush(g, 0, 10, 0, "ST_C")
    stamp_flush(g, 1, 10, 4, "ST_L")
    g("s_endpgm")


def gen(g):
    g(f".globl {KNAME}\n.p2align 8\n.type {KNAME},@function\n{KNAME}:")
    stamp(g, 0)
    g("s_cmp_ge_u32 s2, 256\ns_cbranch_scc1 END")
    g(f"s_load_dwordx4 s[{sX}:{sX+3}], s[0:1], 0\ns_load_dwordx2 s[{sWOA}:{sWOA+1}], s[0:1], 16\ns_load_dwordx4 s[{sWB}:{sWB+3}], s[0:1], 32")
    g(f"s_load_dwordx2 s[{sGT}:{sGT+1}], s[0:1], 48\ns_load_dwordx4 s[{sOUT}:{sOUT+3}], s[0:1], 56\ns_load_dwordx2 s[{sWS}:{sWS+1}], s[0:1], 72")
    g("s_and_b32 s80, s2, 7\ns_lshr_b32 s81, s2, 3")
    g(f"s_and_b32 s{sRB}, s80, 1\ns_lshl_b32 s{sRB}, s{sRB}, 3\ns_and_b32 s82, s81, 7\ns_add_u32 s{sRB}, s{sRB}, s82")
    g(f"s_lshr_b32 s83, s81, 3\ns_lshr_b32 s{sTY}, s83, 1")
    g(f"s_lshr_b32 s{sHG}, s80, 1\ns_lshl_b32 s{sHG}, s{sHG}, 1\ns_and_b32 s84, s83, 1\ns_add_u32 s{sHG}, s{sHG}, s84")
    if OPT["rot"]:
        g(f"s_lshl_b32 s{sROT}, s83, 1\ns_add_u32 s{sROT}, s{sROT}, s{sRB}\ns_and_b32 s{sROT}, s{sROT}, 7")
    else:
        g(f"s_mov_b32 s{sROT}, 0")
    g(f"s_lshl_b32 s{sP}, s80, 2\ns_and_b32 s84, s81, 3\ns_add_u32 s{sP}, s{sP}, s84\ns_lshr_b32 s{sNB}, s81, 2")
    g(f"s_lshl_b32 s{sL}, s{sRB}, 4\ns_lshl_b32 s84, s{sTY}, 3\ns_add_u32 s{sL}, s{sL}, s84\ns_add_u32 s{sL}, s{sL}, s{sHG}")
    g(f"v_lshrrev_b32 v1, 6, v0\nv_and_b32 v0, 63, v0\nv_readfirstlane_b32 s{sWV}, v1")
    g(f"s_cmp_lt_u32 s{sWV}, 4\ns_cbranch_scc1 COMPUTE")
    loader(g)
    g("COMPUTE:")
    g("s_waitcnt lgkmcnt(0)")
    comp_prologue(g)
    g(f"s_cmp_eq_u32 s{sTY}, 0\ns_cbranch_scc1 COMPA")
    Q, K, V = comp_mainloop(g, 1)
    epi_B(g, Q, K, V)
    g("s_waitcnt vmcnt(0)\ns_branch JOIN9")
    g("COMPA:")
    mark = len(g.L)
    Q, K, V = comp_mainloop(g, 0)
    idx = next(i for i in range(mark, len(g.L)) if g.L[i] == "s_barrier")
    sub = G()
    sub(f"s_or_b32 s82, s{sRB}, s{sWV}\ns_cmp_lg_u32 s82, 0\ns_cbranch_scc1 NOINITFLAG")
    set_flag(sub, 1, 20)
    sub("NOINITFLAG:")
    g.L[idx + 1:idx + 1] = sub.L
    epi_A(g, Q, K, V)
    g("s_waitcnt vmcnt(0)\ns_branch JOIN9")
    phase2(g)
    g("END:\ns_endpgm")


def main(path):
    g = G()
    hdr = open("cdna_kernels/" + NAME + ".s.ref").read().split("; Override launch geometry")[0]
    out = hdr
    out += f"; @launch grid=(256,1,1) block=(512,1,1) lds={LDS_BYTES}\n"
    out += '.amdgcn_target "amdgcn-amd-amdhsa--gfx950"\n.text\n'
    gen(g)
    out += g.text()
    out += f""".section .rodata,"a"
.p2align 6
.amdhsa_kernel {KNAME}
  .amdhsa_next_free_vgpr 256
  .amdhsa_next_free_sgpr 100
  .amdhsa_accum_offset 256
  .amdhsa_group_segment_fixed_size 0
  .amdhsa_kernarg_size 80
  .amdhsa_user_sgpr_count 2
  .amdhsa_user_sgpr_kernarg_segment_ptr 1
  .amdhsa_system_sgpr_workgroup_id_x 1
.end_amdhsa_kernel
"""
    open(path, "w").write(out)
    print("auto nops added:", g.added, "lines:", len(g.L))


if __name__ == "__main__":
    args = sys.argv[1:]
    if "--cyc" in args:
        OPT["clk"] = "s_memtime"
        args.remove("--cyc")
    if "--stamp" in args:
        OPT["stamp"] = True
        args.remove("--stamp")
    if "--norot" in args:
        OPT["rot"] = False
        args.remove("--norot")
    main(args[0] if args else "cdna_kernels/" + NAME + ".s")
```
